```python
import torch

def _softmax(x, axis=-1):
    return torch.softmax(x, dim=axis)
def _gelu(x):
    return torch.nn.functional.gelu(x, approximate="tanh")
def _silu(x):
    return torch.nn.functional.silu(x)
def _sigmoid(x):
    return torch.sigmoid(x)
def _layernorm(x, axis=-1, eps=1e-5):
    m = x.mean(dim=axis, keepdim=True)
    v = x.var(dim=axis, keepdim=True, unbiased=False)
    return (x - m) / torch.sqrt(v + eps)
def _scatter_add(tgt, idx, src, axis=0):
    return tgt.clone().index_add_(axis, idx, src)
def _segment_sum(src, seg, n):
    out = torch.zeros((n,) + src.shape[1:], dtype=src.dtype)
    return out.index_add_(0, seg, src)
def _pad(x, pw):
    flat = tuple(v for pair in reversed(pw) for v in pair)
    return torch.nn.functional.pad(x, flat)

kernel_name = 'concat_heads__gqa_block_cached__gqa_block_cached__near_ridge'

def setup_inputs():

    _w = (lambda a: (lambda t: t.to(torch.bfloat16) if t.is_floating_point() else t)(torch.as_tensor(a)))
    def _A_setup():
        B, Sq, D = 16, 32, 576
        Hq, Hkv, Sk, Dh = 32, 16, 32, 128
        assert Hq % Hkv == 0, (Hq, Hkv)
        return {
            "x": _w((lambda *s: torch.randn(*s, dtype=torch.bfloat16) * 0.8)(B, Sq, D)),
            "k_cache": _w((lambda *s: torch.randn(*s, dtype=torch.bfloat16) * 0.8)(B, Hkv, Sk, Dh)),
            "v_cache": _w((lambda *s: torch.randn(*s, dtype=torch.bfloat16) * 0.05)(B, Hkv, Sk, Dh)),
            "wq": _w((lambda *s: torch.randn(*s, dtype=torch.bfloat16) * 0.8)(D, Hq * Dh) * (D ** -0.5)),
            "wo": _w((lambda *s: torch.randn(*s, dtype=torch.bfloat16) * 0.05)(Hq * Dh, D) * ((Hq * Dh) ** -0.5)),
        }
    _A_in = _A_setup()

    def _B_setup():
        B, Sq, D = 16, 32, 576
        Hq, Hkv, Sk, Dh = 32, 16, 32, 128
        assert Hq % Hkv == 0, (Hq, Hkv)
        return {
            "x": _w((lambda *s: torch.randn(*s, dtype=torch.bfloat16) * 0.8)(B, Sq, D)),
            "k_cache": _w((lambda *s: torch.randn(*s, dtype=torch.bfloat16) * 0.8)(B, Hkv, Sk, Dh)),
            "v_cache": _w((lambda *s: torch.randn(*s, dtype=torch.bfloat16) * 0.05)(B, Hkv, Sk, Dh)),
            "wq": _w((lambda *s: torch.randn(*s, dtype=torch.bfloat16) * 0.8)(D, Hq * Dh) * (D ** -0.5)),
            "wo": _w((lambda *s: torch.randn(*s, dtype=torch.bfloat16) * 0.05)(Hq * Dh, D) * ((Hq * Dh) ** -0.5)),
        }
    _B_in = _B_setup()

    return {
        "A_x": _A_in["x"],
        "A_k_cache": _A_in["k_cache"],
        "A_v_cache": _A_in["v_cache"],
        "A_wq": _A_in["wq"],
        "A_wo": _A_in["wo"],
        "B_x": _B_in["x"],
        "B_k_cache": _B_in["k_cache"],
        "B_v_cache": _B_in["v_cache"],
        "B_wq": _B_in["wq"],
        "B_wo": _B_in["wo"],
    }

def reference(A_x, A_k_cache, A_v_cache, A_wq, A_wo, B_x, B_k_cache, B_v_cache, B_wq, B_wo):
    def _A_ref(x, k_cache, v_cache, wq, wo):
        B, Sq, D = x.shape
        Hq, Dh = 32, 128
        Hkv = k_cache.shape[1]
        rep = Hq // Hkv
        q = (lambda x, *d: x.permute(*d))((x @ wq).reshape(B, Sq, Hq, Dh), 0, 2, 1, 3)
        k = (lambda x, n, axis: torch.repeat_interleave(x, n, dim=axis))(k_cache, rep, axis=1)
        v = (lambda x, n, axis: torch.repeat_interleave(x, n, dim=axis))(v_cache, rep, axis=1)
        scores = torch.einsum("bhqd,bhkd->bhqk", q, k) * (Dh ** -0.5)
        p = _softmax(scores, axis=-1)
        o = torch.einsum("bhqk,bhkd->bhqd", p, v)
        return (lambda x, *d: x.permute(*d))(o, 0, 2, 1, 3).reshape(B, Sq, Hq * Dh) @ wo

    def _B_ref(x, k_cache, v_cache, wq, wo):
        B, Sq, D = x.shape
        Hq, Dh = 32, 128
        Hkv = k_cache.shape[1]
        rep = Hq // Hkv
        q = (lambda x, *d: x.permute(*d))((x @ wq).reshape(B, Sq, Hq, Dh), 0, 2, 1, 3)
        k = (lambda x, n, axis: torch.repeat_interleave(x, n, dim=axis))(k_cache, rep, axis=1)
        v = (lambda x, n, axis: torch.repeat_interleave(x, n, dim=axis))(v_cache, rep, axis=1)
        scores = torch.einsum("bhqd,bhkd->bhqk", q, k) * (Dh ** -0.5)
        p = _softmax(scores, axis=-1)
        o = torch.einsum("bhqk,bhkd->bhqd", p, v)
        return (lambda x, *d: x.permute(*d))(o, 0, 2, 1, 3).reshape(B, Sq, Hq * Dh) @ wo

    a = _A_ref(A_x, A_k_cache, A_v_cache, A_wq, A_wo)
    b = _B_ref(B_x, B_k_cache, B_v_cache, B_wq, B_wo)
    return torch.concatenate([a, b], axis=-1)
```

```python
class Asm:
    def __init__(self):
        self.lines = []
        self._lab = 0

    def __call__(self, s, *args):
        if args:
            s = s % args
        for ln in s.split("\n"):
            ln = ln.strip()
            if ln:
                self.lines.append("    " + ln if not ln.endswith(":") else ln)

    def label(self, name):
        self.lines.append(name + ":")

    def newlabel(self, stem="L"):
        self._lab += 1
        return "%s_%d" % (stem, self._lab)

    def comment(self, s):
        self.lines.append("    ; " + s)

    def raw(self, s):
        self.lines.append(s)

    def nop(self, n):
        while n > 0:
            k = min(n, 16)
            self.lines.append("    s_nop %d" % (k - 1))
            n -= k

    def text(self):
        return "\n".join(self.lines) + "\n"


def v(i, n=1):
    return "v%d" % i if n == 1 else "v[%d:%d]" % (i, i + n - 1)


def s(i, n=1):
    return "s%d" % i if n == 1 else "s[%d:%d]" % (i, i + n - 1)


def kernel_desc(name, vgpr, sgpr, accum=None):
    if accum is None:
        accum = (vgpr + 3) // 4 * 4
    return """.p2align 6
.amdhsa_kernel %s
  .amdhsa_next_free_vgpr %d
  .amdhsa_next_free_sgpr %d
  .amdhsa_accum_offset %d
  .amdhsa_group_segment_fixed_size 0
  .amdhsa_kernarg_size 104
  .amdhsa_user_sgpr_count 2
  .amdhsa_user_sgpr_kernarg_segment_ptr 1
  .amdhsa_system_sgpr_workgroup_id_x 1
  .amdhsa_float_denorm_mode_32 3
.end_amdhsa_kernel
""" % (name, vgpr, sgpr, accum)


HEADER = """; Kernarg layout for this problem (104 bytes, ptrs only, base s[0:1]):
"""
```

```python
import sys, argparse
from asmlib import Asm, v, s, kernel_desc, HEADER

NAME = "concat_heads__gqa_block_cached__gqa_block_cached__near_ridge"
STAMP_OFF = 200 << 20

W0 = 0
X0 = 98304
KREG = 122880
SPARE = 155648
LDS_TOTAL = 163840
PART = 73728

S_WAVE, S_BR, S_KVH, S_BP, S_T = 3, 4, 5, 6, 7
R_X, R_WQ, R_WO, R_KV, R_P, R_ST = 8, 12, 16, 20, 24, 28
S_T1, S_T2, S_T3, S_T4 = 32, 33, 34, 35
KA = 36
S_STAMP = 64
S_ROT, S_BL, S_HH = 62, 63, 100
S_C = 101


class Opt:
    pass


def srd(a, r, base_lo, base_hi, off_s, nbytes):
    if off_s is None:
        a("s_mov_b32 %s, %s" % (s(r), s(base_lo)))
        a("s_mov_b32 %s, %s" % (s(r + 1), s(base_hi)))
    else:
        a("s_add_u32 %s, %s, %s" % (s(r), s(base_lo), s(off_s)))
        a("s_addc_u32 %s, %s, 0" % (s(r + 1), s(base_hi)))
    a("s_mov_b32 %s, 0x%x" % (s(r + 2), nbytes))
    a("s_mov_b32 %s, 0x00020000" % s(r + 3))


class Stamper:
    def __init__(self, a, on):
        self.a, self.on, self.n = a, on, 0

    def stamp(self):
        if self.on:
            assert self.n < 16
            self.a("s_memrealtime %s" % s(S_STAMP + 2 * self.n, 2))
            self.n += 1

    def flush(self, wgs=2, koff=0):
        a = self.a
        if not self.on:
            return
        a("s_waitcnt lgkmcnt(0)")
        a("s_lshl_b32 %s, s2, 3" % s(S_T1))
        a("s_add_u32 %s, %s, %s" % (s(S_T1), s(S_T1), s(S_WAVE)))
        a("s_lshl_b32 %s, %s, 7" % (s(S_T1), s(S_T1)))
        a("s_add_u32 %s, %s, 0x%x" % (s(S_T1), s(S_T1), STAMP_OFF + koff))
        srd(a, R_ST, KA + 24, KA + 25, S_T1, 128)
        a("v_mov_b32 v1, 0")
        for i in range(self.n):
            a("v_mov_b32 v2, %s" % s(S_STAMP + 2 * i))
            a("v_mov_b32 v3, %s" % s(S_STAMP + 2 * i + 1))
            a("buffer_store_dwordx2 v[2:3], v1, %s, 0 offen offset:%d" % (s(R_ST, 4), 8 * i))
            a("s_nop 1")


class Pipe:
    def __init__(self, a, maxout=14):
        self.a = a
        self.q = []
        self.maxout = maxout
        self.ninstr = 0

    def emit(self, txt):
        self.a(txt)
        self.ninstr += len([x for x in txt.split("\n") if x.strip()])

    def lds(self, txt, tag):
        self.emit(txt)
        self.q.append(tag)

    def need(self, tags):
        idx = -1
        for i, t in enumerate(self.q):
            if t in tags:
                idx = i
        if idx >= 0:
            n = len(self.q) - idx - 1
            self.emit("s_waitcnt lgkmcnt(%d)" % n)
            self.q = self.q[idx + 1:]

    def drain(self):
        self.emit("s_waitcnt lgkmcnt(0)")
        self.q = []

    def run(self, items, reads, rate):
        ri = 0
        issued = set()

        def issue_one():
            nonlocal ri
            r = reads[ri]
            if r.get("pre"):
                r["pre"](self)
            self.lds(r["txt"], r["tag"])
            issued.add(r["tag"])
            ri += 1

        while ri < len(reads) and reads[ri]["gate"] < 0 and len(self.q) < self.maxout:
            issue_one()
        for i, it in enumerate(items):
            for t in it["needs"]:
                while t not in issued and any(t == r["tag"] for r in reads[ri:]):
                    assert reads[ri]["gate"] < i, (i, reads[ri])
                    issue_one()
            self.need(set(it["needs"]))
            self.emit(it["mfma"])
            it["at"] = self.ninstr
            n = 0
            while ri < len(reads) and reads[ri]["gate"] <= i and n < rate and (
                    len(self.q) < self.maxout or reads[ri].get("pre")):
                issue_one()
                n += 1
            for p in it.get("post", []):
                p(self)
        assert ri == len(reads)


def prologue(a, o, nwg):
    a("s_cmp_ge_u32 s2, %d" % nwg)
    a("s_cbranch_scc1 %s" % o.end)
    a("s_load_dwordx16 %s, s[0:1], 0" % s(KA, 16))
    a("s_load_dwordx4 %s, s[0:1], 64" % s(KA + 16, 4))
    a("s_load_dwordx4 %s, s[0:1], 80" % s(KA + 20, 4))
    a("s_load_dwordx2 %s, s[0:1], 96" % s(KA + 24, 2))
    a("v_lshrrev_b32 v1, 6, v0")
    a("v_and_b32 v0, 63, v0")
    a("v_readfirstlane_b32 %s, v1" % s(S_WAVE))


def main_kernel(a, o):
    st = Stamper(a, o.stamps)
    name = o.main_name
    a.raw(".globl %s\n.p2align 8\n.type %s,@function\n%s:" % (name, name, name))
    o.end = "L_main_end"
    st.stamp()
    prologue(a, o, 256)
    a("s_lshr_b32 %s, s2, 2" % s(S_BR))
    a("s_and_b32 %s, %s, 1" % (s(S_BR), s(S_BR)))
    a("s_and_b32 %s, s2, 3" % s(S_KVH))
    a("s_lshl_b32 %s, %s, 2" % (s(S_KVH), s(S_KVH)))
    a("s_lshr_b32 %s, s2, 6" % s(S_T))
    a("s_add_u32 %s, %s, %s" % (s(S_KVH), s(S_KVH), s(S_T)))
    a("s_lshr_b32 %s, s2, 3" % s(S_BP))
    a("s_and_b32 %s, %s, 7" % (s(S_BP), s(S_BP)))
    if o.rot:
        a("s_mul_i32 %s, %s, %d" % (s(S_ROT), s(S_BP), o.rot))
        a("s_mul_i32 %s, %s, 57" % (s(S_T), s(S_ROT)))
        a("s_lshr_b32 %s, %s, 9" % (s(S_T), s(S_T)))
        a("s_mul_i32 %s, %s, 9" % (s(S_T), s(S_T)))
        a("s_sub_u32 %s, %s, %s" % (s(S_ROT), s(S_ROT), s(S_T)))
    else:
        a("s_mov_b32 %s, 0" % s(S_ROT))
    a("s_waitcnt lgkmcnt(0)")
    a("s_cmp_eq_u32 %s, 0" % s(S_BR))
    for i in range(5):
        a("s_cselect_b64 %s, %s, %s" % (s(KA + 2 * i, 2), s(KA + 2 * i, 2), s(KA + 10 + 2 * i, 2)))
    PX, PK, PV, PWQ, PWO = KA, KA + 2, KA + 4, KA + 6, KA + 8
    PWS = KA + 24
    a("s_mul_i32 %s, %s, %d" % (s(S_T), s(S_KVH), 256 * 1152))
    srd(a, R_WO, PWO, PWO + 1, S_T, 256 * 1152)
    a("s_cmp_ge_u32 %s, 4" % s(S_WAVE))
    a("s_cbranch_scc1 L_loader")
    compute(a, o, st, PK, PV, PWS)
    a("s_branch %s" % o.end)
    a.label("L_loader")
    st2 = Stamper(a, o.stamps)
    st2.n = 1 if o.stamps else 0
    loader(a, o, st2, PX, PWQ)
    a.label(o.end)
    a("s_endpgm")


def stage_off(a, sidx, mult, dst):
    a("s_add_u32 %s, %s, %d" % (s(dst), s(S_ROT), sidx))
    a("s_cmp_ge_u32 %s, 9" % s(dst))
    a("s_cselect_b32 %s, 9, 0" % s(S_T))
    a("s_sub_u32 %s, %s, %s" % (s(dst), s(dst), s(S_T)))
    a("s_mul_i32 %s, %s, %d" % (s(dst), s(dst), mult))


def loader(a, o, st, PX, PWQ):
    LW = S_BL
    a("s_sub_u32 %s, %s, 4" % (s(LW), s(S_WAVE)))
    a("s_mul_i32 %s, %s, %d" % (s(S_T), s(S_BP), 64 * 1152))
    srd(a, R_X, PX, PX + 1, S_T, 64 * 1152)
    a("s_lshl_b32 %s, %s, 9" % (s(S_T), s(S_KVH)))
    srd(a, R_WQ, PWQ, PWQ + 1, S_T, 575 * 8192 + 512)
    VWQ, VX, VWO = 10, 11, 12
    a("v_lshrrev_b32 v1, 5, v0")
    a("s_and_b32 %s, %s, 1" % (s(S_T), s(LW)))
    a("s_lshl_b32 %s, %s, 1" % (s(S_T1), s(S_T)))
    a("v_add_u32 v2, %s, v1" % s(S_T1))
    a("v_lshlrev_b32 v2, 2, v2")
    a("v_and_b32 v3, 31, v0")
    a("v_xor_b32 v2, v2, v3")
    a("v_lshlrev_b32 v2, 4, v2")
    a("v_lshl_add_u32 v2, v1, 13, v2")
    a("s_lshl_b32 %s, %s, 14" % (s(S_T1), s(LW)))
    a("v_add_u32 %s, %s, v2" % (v(VWQ), s(S_T1)))
    a("v_lshrrev_b32 v1, 3, v0")
    a("s_lshl_b32 %s, %s, 3" % (s(S_T1), s(LW)))
    a("v_add_u32 v1, %s, v1" % s(S_T1))
    a("v_mul_u32_u24 v1, 1152, v1")
    a("v_lshrrev_b32 v2, 4, v0")
    a("s_lshl_b32 %s, %s, 2" % (s(S_T1), s(S_T)))
    a("v_add_u32 v2, %s, v2" % s(S_T1))
    a("v_and_b32 v3, 7, v0")
    a("v_xor_b32 v2, v2, v3")
    a("v_lshl_add_u32 %s, v2, 4, v1" % v(VX))
    a("v_lshrrev_b32 v2, 2, v0")
    a("v_and_b32 v2, 4, v2")
    a("v_xor_b32 v2, v2, v3")
    a("v_lshl_add_u32 %s, v2, 4, v1" % v(VWO))
    a("s_lshl_b32 %s, %s, 10" % (s(S_T4), s(LW)))

    nt_w = " nt" if o.nt_w else ""

    def issue(sg):
        slot = sg % 3
        if sg < 9:
            stage_off(a, sg, 128, S_T2)
            a("s_lshl_b32 %s, %s, 12" % (s(S_T1), s(S_T2)))
            for i in range(2):
                a("s_add_u32 m0, %s, %d" % (s(S_T4), X0 + slot * 8192 + i * 4096))
                if i:
                    a("s_add_u32 %s, %s, %d" % (s(S_T2), s(S_T2), 36864))
                else:
                    a("s_nop 0")
                a("buffer_load_dwordx4 %s, %s, %s offen lds" % (v(VX), s(R_X, 4), s(S_T2)))
            for i in range(8):
                a("s_add_u32 m0, %s, %d" % (s(S_T4), W0 + slot * 32768 + i * 4096))
                if i:
                    a("s_add_u32 %s, %s, %d" % (s(S_T1), s(S_T1), 65536))
                else:
                    a("s_nop 0")
                a("buffer_load_dwordx4 %s, %s, %s offen%s lds" % (v(VWQ), s(R_WQ, 4), s(S_T1), nt_w))
        else:
            stage_off(a, sg - 9, 128, S_T1)
            for i in range(8):
                a("s_add_u32 m0, %s, %d" % (s(S_T4), W0 + slot * 32768 + i * 4096))
                if i:
                    a("s_add_u32 %s, %s, %d" % (s(S_T1), s(S_T1), 36864))
                else:
                    a("s_nop 0")
                a("buffer_load_dwordx4 %s, %s, %s offen%s lds" % (v(VWO), s(R_WO, 4), s(S_T1), nt_w))

    n = [10] * 9 + [8] * 9 + [0, 0]
    issue(0); issue(1); issue(2)
    st.stamp()
    for sg in range(18):
        a("s_waitcnt vmcnt(%d)" % (n[1] + n[2] if sg == 0 else n[sg + 1]))
        if sg in (0, 1, 2, 4, 6, 8, 9, 10, 12, 14, 16, 17):
            st.stamp()
        a("s_barrier")
        if sg >= 1 and sg + 2 <= 17:
            issue(sg + 2)
        if sg == 9:
            a("s_barrier")
    st.stamp()
    st.flush()


def compute(a, o, st, PK, PV, PWS):
    BL, HH = S_BL, S_HH
    a("s_and_b32 %s, %s, 1" % (s(BL), s(S_WAVE)))
    a("s_lshr_b32 %s, %s, 1" % (s(HH), s(S_WAVE)))
    a("s_cmp_eq_u32 %s, 0" % s(HH))
    a("s_cselect_b64 %s, %s, %s" % (s(PK, 2), s(PK, 2), s(PV, 2)))
    a("s_cselect_b32 %s, 64, 0" % s(S_T3))
    a("s_cselect_b32 %s, 0, 2" % s(S_T4))
    a("s_lshl_b32 %s, %s, 1" % (s(S_T), s(S_BP)))
    a("s_add_u32 %s, %s, %s" % (s(S_T), s(S_T), s(BL)))
    a("s_lshl_b32 %s, %s, 4" % (s(S_T), s(S_T)))
    a("s_add_u32 %s, %s, %s" % (s(S_T), s(S_T), s(S_KVH)))
    a("s_lshl_b32 %s, %s, 13" % (s(S_T), s(S_T)))
    srd(a, R_KV, PK, PK + 1, S_T, 8192)
    a("s_lshl_b32 %s, %s, 3" % (s(S_T), s(S_BR)))
    a("s_add_u32 %s, %s, %s" % (s(S_T), s(S_T), s(S_BP)))
    a("s_lshl_b32 %s, %s, 4" % (s(S_T), s(S_T)))
    a("s_add_u32 %s, %s, %s" % (s(S_T), s(S_T), s(S_KVH)))
    a("s_mul_i32 %s, %s, %d" % (s(S_T), s(S_T), PART))
    srd(a, R_P, PWS, PWS + 1, S_T, PART)

    a("v_lshrrev_b32 v1, 4, v0")
    a("v_lshlrev_b32 v2, %s, v1" % s(S_T4))
    a("v_and_b32 v3, 15, v0")
    a("v_xor_b32 v2, v2, v3")
    a("v_lshlrev_b32 v2, 4, v2")
    a("v_lshl_add_u32 v4, v1, 8, v2")
    a("v_xor_b32 v5, %s, v4" % s(S_T3))
    a("s_lshl_b32 %s, %s, 1" % (s(S_T1), s(S_T3)))
    a("v_xor_b32 v6, %s, v4" % s(S_T1))
    a("v_xor_b32 v7, %s, v6" % s(S_T3))
    a("s_lshl_b32 %s, %s, 14" % (s(S_T1), s(HH)))
    a("s_lshl_b32 %s, %s, 13" % (s(S_T2), s(BL)))
    a("s_add_u32 %s, %s, %s" % (s(S_T1), s(S_T1), s(S_T2)))
    a("s_movk_i32 %s, 4096" % s(S_T2))

    def kv_dma():
        for half in range(2):
            a("s_add_u32 m0, %s, %d" % (s(S_T1), KREG + half * 4096))
            a("s_nop 0")
            for i in range(4):
                a("buffer_load_dwordx4 %s, %s, %s offen offset:%d%s lds" % (
                    v(4 + i), s(R_KV, 4), s(S_T2) if half else "0", i * 1024, " nt" if o.nt_kv else ""))
    if o.kv_at < 0:
        kv_dma()

    VA = 8
    VX = 16
    VK = 20
    VV = 21
    VOW, VOR = 25, 26
    VWO = 27
    VP = 31
    T0, T1, T2, T3 = 32, 33, 34, 35
    VH, VR, VTR = 36, 37, 38
    ACC = 64
    AF = 128
    BF = 160
    QB = 168
    SA = 200
    KF = 216
    a("v_lshrrev_b32 %s, 5, v0" % v(VH))
    a("v_bfe_u32 %s, v0, 2, 2" % v(VR))
    a("v_and_b32 %s, 1, v0" % v(T0))
    a("v_lshlrev_b32 %s, 4, %s" % (v(T0), v(T0)))
    a("v_and_b32 %s, 2, v0" % v(T1))
    a("v_lshl_add_u32 %s, %s, 2, %s" % (v(T0), v(T1), v(T0)))
    a("v_and_b32 %s, 16, v0" % v(T1))
    a("v_lshl_add_u32 %s, %s, 1, %s" % (v(VTR), v(T1), v(T0)))
    a("v_lshl_add_u32 %s, %s, 3, %s" % (v(T2), v(VH), v(VR)))
    a("v_lshl_add_u32 %s, %s, 9, %s" % (v(T0), v(T2), v(VTR)))
    a("s_lshl_b32 %s, %s, 8" % (s(S_T), s(HH)))
    a("v_add_u32 %s, %s, %s" % (v(T0), s(S_T), v(T0)))
    for t in range(4):
        a("v_xor_b32 %s, %d, %s" % (v(T1), t, v(VR)))
        a("v_lshl_add_u32 %s, %s, 6, %s" % (v(VA + t), v(T1), v(T0)))
        a("v_add_u32 %s, 0x10000, %s" % (v(VA + 4 + t), v(VA + t)))
    a("v_lshl_add_u32 %s, %s, 8, %s" % (v(T0), v(T2), v(VTR)))
    a("s_lshl_b32 %s, %s, 13" % (s(S_T), s(BL)))
    a("s_add_u32 %s, %s, %d" % (s(S_T), s(S_T), KREG + 16384))
    a("v_add_u32 %s, %s, %s" % (v(T0), s(S_T), v(T0)))
    for t in range(4):
        a("v_xor_b32 %s, %d, %s" % (v(T1), t, v(VR)))
        a("v_lshl_add_u32 %s, %s, 6, %s" % (v(VV + t), v(T1), v(T0)))
    a("v_lshl_add_u32 %s, %s, 7, %s" % (v(T0), v(T2), v(VTR)))
    a("v_lshrrev_b32 %s, 1, %s" % (v(T1), v(VR)))
    a("v_xor_b32 %s, %s, %s" % (v(T1), s(HH), v(T1)))
    a("v_lshl_add_u32 %s, %s, 6, %s" % (v(T0), v(T1), v(T0)))
    a("s_lshl_b32 %s, %s, 14" % (s(S_T), s(HH)))
    a("v_add_u32 %s, %s, %s" % (v(VWO), s(S_T), v(T0)))
    a("v_xor_b32 %s, 0x4000, %s" % (v(VWO + 1), v(VWO)))
    a("v_add_u32 %s, 0x10000, %s" % (v(VWO + 2), v(VWO)))
    a("v_add_u32 %s, 0x10000, %s" % (v(VWO + 3), v(VWO + 1)))
    a("v_and_b32 %s, 31, v0" % v(T0))
    a("v_bfe_u32 %s, v0, 1, 3" % v(T1))
    a("v_xor_b32 %s, %s, %s" % (v(T1), v(T1), v(VH)))
    a("v_lshlrev_b32 %s, 4, %s" % (v(T1), v(T1)))
    a("v_lshl_add_u32 %s, %s, 7, %s" % (v(T1), v(T0), v(T1)))
    a("s_lshl_b32 %s, %s, 12" % (s(S_T), s(BL)))
    a("s_add_u32 %s, %s, %d" % (s(S_T), s(S_T), X0))
    a("v_add_u32 %s, %s, %s" % (v(VX), s(S_T), v(T1)))
    for j in range(1, 4):
        a("v_xor_b32 %s, %d, %s" % (v(VX + j), 32 * j, v(VX)))
    a("v_and_b32 %s, 0x13, %s" % (v(T1), v(T0)))
    a("v_and_b32 %s, 4, %s" % (v(T2), v(T0)))
    a("v_lshl_add_u32 %s, %s, 1, %s" % (v(T1), v(T2), v(T1)))
    a("v_and_b32 %s, 8, %s" % (v(T2), v(T0)))
    a("v_lshrrev_b32 %s, 1, %s" % (v(T2), v(T2)))
    a("v_add_u32 %s, %s, %s" % (v(T1), v(T1), v(T2)))
    a("v_and_b32 %s, 15, %s" % (v(T2), v(T1)))
    a("v_xor_b32 %s, %s, %s" % (v(T2), v(T2), v(VH)))
    a("v_lshlrev_b32 %s, 4, %s" % (v(T2), v(T2)))
    a("v_lshl_add_u32 %s, %s, 8, %s" % (v(T1), v(T1), v(T2)))
    a("s_lshl_b32 %s, %s, 13" % (s(S_T), s(BL)))
    a("s_add_u32 %s, %s, %d" % (s(S_T), s(S_T), KREG))
    a("v_add_u32 %s, %s, %s" % (v(VK), s(S_T), v(T1)))
    a("s_lshl_b32 %s, %s, 13" % (s(S_T), s(S_WAVE)))
    a("s_add_u32 %s, %s, %d" % (s(S_T), s(S_T), X0))
    a("s_cmp_eq_u32 %s, 3" % s(S_WAVE))
    a("s_cselect_b32 %s, %d, %s" % (s(S_T), SPARE, s(S_T)))
    a("v_lshl_add_u32 %s, v0, 4, %s" % (v(VOW), s(S_T)))
    a("s_xor_b32 %s, %s, 2" % (s(S_T), s(S_WAVE)))
    a("s_cmp_eq_u32 %s, 3" % s(S_T))
    a("s_cselect_b32 %s, 1, 0" % s(S_C))
    a("s_lshl_b32 %s, %s, 13" % (s(S_T), s(S_T)))
    a("s_add_u32 %s, %s, %d" % (s(S_T), s(S_T), X0))
    a("s_cmp_eq_u32 %s, 1" % s(S_C))
    a("s_cselect_b32 %s, %d, %s" % (s(S_T), SPARE, s(S_T)))
    a("v_lshl_add_u32 %s, v0, 4, %s" % (v(VOR), s(S_T)))
    a("s_mul_i32 %s, %s, 18" % (s(S_T), s(BL)))
    a("s_add_u32 %s, %s, %s" % (s(S_T), s(S_T), s(HH)))
    a("s_lshl_b32 %s, %s, 11" % (s(S_T), s(S_T)))
    a("v_lshl_add_u32 %s, v0, 4, %s" % (v(VP), s(S_T)))
    import math, struct
    cbits = struct.unpack("<I", struct.pack("<f", (128 ** -0.5) * math.log2(math.e)))[0]
    a("s_mov_b32 %s, 0x%x" % (s(S_C), cbits))

    p = Pipe(a, o.maxout)
    stamp_stages = (0, 1, 2, 4, 6, 8, 9, 10, 12, 14, 16, 17)

    def barrier(sg, extra=None):
        def f(pp):
            if sg in stamp_stages and sg != 0:
                st.stamp()
            if extra:
                extra(pp)
            pp.drain()
            pp.emit("s_barrier")
            if sg == o.kv_at:
                kv_dma()
        return f

    items, reads = [], []
    NA, NB = 8, 2
    an = 0
    bn = 0
    last_use_a = [-1] * NA
    last_use_b = [-1] * NB
    for sg in range(9):
        slot = sg % 3
        for j in range(4):
            base_i = len(items)
            sgate = -1 if sg == 0 else (sg * 16 - 4 + o.bpos)
            bb = bn % NB; bn += 1
            g = max(sgate, last_use_b[bb])
            rd = dict(txt="ds_read_b128 %s, %s offset:%d" % (v(BF + 4 * bb, 4), v(VX + j), slot * 8192),
                      tag=("B", sg, j), gate=g)
            if j == 0:
                rd["pre"] = barrier(sg)
            reads.append(rd)
            last_use_b[bb] = base_i + 3
            for t in range(4):
                ab = an % NA; an += 1
                g = max(sgate, last_use_a[ab])
                va = VA + t + (4 if slot == 2 else 0)
                off = (slot % 2 if slot < 2 else 0) * 32768 + j * 8192
                for i in range(2):
                    reads.append(dict(txt="ds_read_b64_tr_b16 %s, %s offset:%d" % (
                        v(AF + 4 * ab + 2 * i, 2), v(va), off + i * 2048), tag=("A", sg, j, t, i), gate=g))
                last_use_a[ab] = base_i + t
                first = (sg == 0 and j == 0)
                items.append(dict(
                    mfma="v_mfma_f32_32x32x16_bf16 %s, %s, %s, %s" % (
                        v(ACC + 16 * t, 16), v(AF + 4 * ab, 4), v(BF + 4 * bb, 4),
                        "0" if first else v(ACC + 16 * t, 16)),
                    needs=[("B", sg, j), ("A", sg, j, t, 0), ("A", sg, j, t, 1)]))
    kgate = 9 * 16 - 4 + o.bpos
    for m in range(8):
        if m:
            txt = "v_xor_b32 %s, %d, %s\nds_read_b128 %s, %s" % (v(T0 + (m & 1)), 32 * m, v(VK), v(KF + 4 * m, 4), v(T0 + (m & 1)))
        else:
            txt = "ds_read_b128 %s, %s" % (v(KF, 4), v(VK))
        rd = dict(txt=txt, tag=("K", m), gate=kgate)
        if m == 0:
            rd["pre"] = barrier(9, lambda pp: pp.emit("s_waitcnt vmcnt(0)"))
        reads.append(rd)
    n_p1 = len(items)

    def cvt_block(src, dst, n):
        return "\n".join("v_cvt_pk_bf16_f32 %s, %s, %s" % (v(dst + i), v(src + 2 * i), v(src + 2 * i + 1))
                         for i in range(n))

    def pre_cvt(t):
        def f(pp):
            d = pp.ninstr - items[n_p1 - 4 + t]["at"]
            if d < 12:
                pp.a.nop(12 - d); pp.ninstr += 1
            pp.emit(cvt_block(ACC + 16 * t, QB + 8 * t, 8))
        return f
    items[n_p1 - 1]["post"] = [pre_cvt(0), lambda pp: pp.emit("s_nop 1")]
    for m in range(8):
        it = dict(mfma="v_mfma_f32_32x32x16_bf16 %s, %s, %s, %s" % (
            v(SA, 16), v(KF + 4 * m, 4), v(QB + 4 * m, 4), "0" if m == 0 else v(SA, 16)),
            needs=[("K", m)])
        if m % 2 == 0 and m < 6:
            it["post"] = [pre_cvt(m // 2 + 1)]
        items.append(it)
    for t in range(4):
        for m in range(2):
            for i in range(2):
                reads.append(dict(txt="ds_read_b64_tr_b16 %s, %s offset:%d" % (
                    v(AF + 8 * t + 4 * m + 2 * i, 2), v(VV + t), m * 4096 + i * 1024),
                    tag=("V", t, m, i), gate=n_p1 + 1 + t))
    def softmax(pp):
        e = pp.emit
        if o.stamps:
            pass
        e("s_nop 7")
        e("s_nop 3")
        S = SA
        e("v_max3_f32 %s, %s, %s, %s" % (v(T0), v(S), v(S + 1), v(S + 2)))
        e("v_max3_f32 %s, %s, %s, %s" % (v(T1), v(S + 3), v(S + 4), v(S + 5)))
        e("v_max3_f32 %s, %s, %s, %s" % (v(T2), v(S + 6), v(S + 7), v(S + 8)))
        e("v_max3_f32 %s, %s, %s, %s" % (v(T3), v(S + 9), v(S + 10), v(S + 11)))
        e("v_max3_f32 %s, %s, %s, %s" % (v(T0), v(T0), v(S + 12), v(S + 13)))
        e("v_max3_f32 %s, %s, %s, %s" % (v(T1), v(T1), v(S + 14), v(S + 15)))
        e("v_max3_f32 %s, %s, %s, %s" % (v(T0), v(T0), v(T2), v(T3)))
        e("v_max_f32 %s, %s, %s" % (v(T0), v(T0), v(T1)))
        e("v_mov_b32 %s, %s" % (v(T1), v(T0)))
        e("s_nop 1")
        e("v_permlane32_swap_b32 %s, %s" % (v(T0), v(T1)))
        e("s_nop 1")
        e("v_max_f32 %s, %s, %s" % (v(T0), v(T0), v(T1)))
        e("v_mul_f32 %s, %s, %s" % (v(T0), s(S_C), v(T0)))
        for i in range(16):
            e("v_fma_f32 %s, %s, %s, -%s" % (v(S + i), v(S + i), s(S_C), v(T0)))
        for i in range(16):
            e("v_exp_f32 %s, %s" % (v(S + i), v(S + i)))
        e("v_add_f32 %s, %s, %s" % (v(T0), v(S), v(S + 1)))
        e("v_add_f32 %s, %s, %s" % (v(T1), v(S + 2), v(S + 3)))
        e("v_add_f32 %s, %s, %s" % (v(T2), v(S + 4), v(S + 5)))
        e("v_add_f32 %s, %s, %s" % (v(T3), v(S + 6), v(S + 7)))
        for i in range(8):
            e("v_add_f32 %s, %s, %s" % (v(T0 + (i & 3)), v(T0 + (i & 3)), v(S + 8 + i)))
        e("v_add_f32 %s, %s, %s" % (v(T0), v(T0), v(T1)))
        e("v_add_f32 %s, %s, %s" % (v(T2), v(T2), v(T3)))
        e("v_add_f32 %s, %s, %s" % (v(T0), v(T0), v(T2)))
        e("v_mov_b32 %s, %s" % (v(T1), v(T0)))
        e("s_nop 1")
        e("v_permlane32_swap_b32 %s, %s" % (v(T0), v(T1)))
        e("s_nop 1")
        e("v_add_f32 %s, %s, %s" % (v(T0), v(T0), v(T1)))
        e("v_rcp_f32 %s, %s" % (v(T0), v(T0)))
        e("s_nop 0")
        for i in range(16):
            e("v_mul_f32 %s, %s, %s" % (v(S + i), v(S + i), v(T0)))
        e(cvt_block(S, BF, 8))
        e("s_nop 1")
    items[-1]["post"] = [softmax]
    n_s = len(items)
    OB = QB
    for t in range(4):
        for m in range(2):
            it = dict(mfma="v_mfma_f32_32x32x16_bf16 %s, %s, %s, %s" % (
                v(ACC + 16 * t, 16), v(AF + 8 * t + 4 * m, 4), v(BF + 4 * m, 4),
                "0" if m == 0 else v(ACC + 16 * t, 16)),
                needs=[("V", t, m, 0), ("V", t, m, 1)])
            items.append(it)

    def o_out(t):
        def f(pp):
            d = pp.ninstr - items[n_s + 2 * t + 1]["at"]
            if d < 12:
                pp.a.nop(12 - d); pp.ninstr += 1
            pp.emit(cvt_block(ACC + 16 * t, OB + 8 * t, 8))
            for m in range(2):
                pp.lds("ds_write_b128 %s, %s offset:%d" % (v(VOW), v(OB + 8 * t + 4 * m, 4), (2 * t + m) * 1024),
                       ("OW", t, m))
        return f
    items[n_s + 3].setdefault("post", []).append(o_out(0))
    items[n_s + 5].setdefault("post", []).append(o_out(1))
    items[n_s + 7].setdefault("post", []).append(o_out(2))
    items[n_s + 7]["post"].append(o_out(3))
    n_pv = len(items)

    PO = KF
    A2 = AF
    ACC2 = 64
    STG = 96
    NA2 = o.na2
    last_use = [n_pv - 1] * 8
    an = 0
    for c in range(9):
        sg = 9 + c
        slot = sg % 3
        cbase = len(items)
        for j in range(16):
            ab = an % NA2; an += 1
            sgate = -1 if c == 0 else (cbase - 16 + o.bpos2)
            g = max(sgate, last_use[ab])
            va = VWO + (j >> 3) + (2 if slot == 2 else 0)
            off = (slot if slot < 2 else 0) * 32768 + (j & 7) * 2048
            if c == 0 and j >= 8:
                rd = dict(txt="ds_read_b128 %s, %s offset:%d" % (v(PO + 4 * (j - 8), 4), v(VOR), (j - 8) * 1024),
                          tag=("PO", j - 8), gate=cbase + o.opos)
                if j == 8:
                    def opre(pp):
                        pp.drain()
                        pp.emit("s_barrier")
                    rd["pre"] = opre
                reads.append(rd)
            for i in range(2):
                rd = dict(txt="ds_read_b64_tr_b16 %s, %s offset:%d" % (
                    v(A2 + 4 * ab + 2 * i, 2), v(va), off + i * 512), tag=("A2", c, j, i), gate=g)
                if j == 0 and i == 0 and c > 0:
                    rd["pre"] = barrier(sg)
                reads.append(rd)
            last_use[ab] = cbase + j
            acc = ACC2 + 16 * (c & 1)
            bsrc = OB + 4 * j if j < 8 else PO + 4 * (j - 8)
            needs = [("A2", c, j, 0), ("A2", c, j, 1)]
            if c == 0 and j >= 8:
                needs.append(("PO", j - 8))
            items.append(dict(mfma="v_mfma_f32_32x32x16_bf16 %s, %s, %s, %s" % (
                v(acc, 16), v(A2 + 4 * ab, 4), v(bsrc, 4), "0" if j == 0 else v(acc, 16)), needs=needs))

    def epi(c):
        def f(pp):
            d = pp.ninstr - items[n_pv + 16 * c + 15]["at"]
            if d < 12:
                pp.a.nop(12 - d); pp.ninstr += 1
            acc = ACC2 + 16 * (c & 1)
            stage_off(pp.a, c, 4096, S_T1)
            pp.ninstr += 5
            for m in range(2):
                pp.emit(cvt_block(acc + 8 * m, STG + 8 * (c & 1) + 4 * m, 4))
                pp.emit("buffer_store_dwordx4 %s, %s, %s, %s offen offset:%d%s" % (
                    v(STG + 8 * (c & 1) + 4 * m, 4), v(VP), s(R_P, 4), s(S_T1), m * 1024, o.st_flags))
        return f
    for c in range(9):
        idx = n_pv + 16 * (c + 1) + 3 if c < 8 else len(items) - 1
        items[idx].setdefault("post", []).append(epi(c))
    p.run(items, reads, o.rate)
    st.stamp()
    if o.stamps:
        a("s_waitcnt vmcnt(0)")
        st.stamp()
    st.flush()


def reduce_kernel(a, o):
    name = o.red_name
    a.raw(".globl %s\n.p2align 8\n.type %s,@function\n%s:" % (name, name, name))
    o.end = "L_red_end"
    st = Stamper(a, o.stamps)
    st.stamp()
    a("s_cmp_ge_u32 s2, 288")
    a("s_cbranch_scc1 %s" % o.end)
    a("s_load_dwordx2 %s, s[0:1], 80" % s(KA + 20, 2))
    a("s_load_dwordx2 %s, s[0:1], 96" % s(KA + 24, 2))
    a("v_lshrrev_b32 v1, 6, v0")
    a("v_and_b32 v0, 63, v0")
    a("v_readfirstlane_b32 %s, v1" % s(S_WAVE))
    a("s_lshl_b32 s4, s2, 2")
    a("s_add_u32 s4, s4, %s" % s(S_WAVE))
    a("s_and_b32 s5, s4, 1")
    a("s_lshr_b32 s4, s4, 1")
    a("s_mul_i32 s6, s4, 3641")
    a("s_lshr_b32 s6, s6, 16")
    a("s_mul_i32 s7, s6, 18")
    a("s_sub_u32 s7, s4, s7")
    a("s_and_b32 s32, s6, 1")
    a("s_lshr_b32 s6, s6, 1")
    a("s_mul_i32 s33, s6, %d" % (16 * PART))
    a("s_waitcnt lgkmcnt(0)")
    srd(a, R_P, KA + 24, KA + 25, 33, 16 * PART)
    srd(a, R_X, KA + 20, KA + 21, None, 512 * 2304)
    a("s_mul_i32 s33, s32, 18")
    a("s_add_u32 s33, s33, s7")
    a("s_lshl_b32 s33, s33, 1")
    a("s_add_u32 s33, s33, s5")
    a("s_lshl_b32 s33, s33, 10")
    a("v_lshl_add_u32 v1, v0, 4, s33")
    a("s_mov_b32 s34, 0")
    for pidx in range(16):
        a("buffer_load_dwordx4 %s, v1, %s, s34 offen%s" % (v(16 + 4 * pidx, 4), s(R_P, 4), o.ld_flags))
        if pidx < 15:
            a("s_add_u32 s34, s34, %d" % PART)
    a("s_and_b32 s33, s6, 7")
    a("s_lshl_b32 s33, s33, 1")
    a("s_add_u32 s33, s33, s32")
    a("s_mul_i32 s33, s33, %d" % (32 * 2304))
    a("s_lshr_b32 s34, s6, 3")
    a("s_mul_i32 s34, s34, 1152")
    a("s_add_u32 s33, s33, s34")
    a("s_lshl_b32 s34, s7, 6")
    a("s_add_u32 s33, s33, s34")
    a("s_lshl_b32 s34, s5, 5")
    a("s_add_u32 s33, s33, s34")
    a("v_and_b32 v2, 31, v0")
    a("v_mul_u32_u24 v2, 2304, v2")
    a("v_lshrrev_b32 v3, 5, v0")
    a("v_lshl_add_u32 v2, v3, 4, v2")
    a("v_add_u32 v2, s33, v2")
    for pidx in range(16):
        a("s_waitcnt vmcnt(%d)" % (15 - pidx))
        for d in range(4):
            r = 16 + 4 * pidx + d
            if pidx == 0:
                a("v_lshlrev_b32 %s, 16, %s" % (v(8 + 2 * d), v(r)))
                a("v_and_b32 %s, 0xffff0000, %s" % (v(9 + 2 * d), v(r)))
            else:
                a("v_lshlrev_b32 v4, 16, %s" % v(r))
                a("v_and_b32 v5, 0xffff0000, %s" % v(r))
                a("v_add_f32 %s, %s, v4" % (v(8 + 2 * d), v(8 + 2 * d)))
                a("v_add_f32 %s, %s, v5" % (v(9 + 2 * d), v(9 + 2 * d)))
    for d in range(4):
        a("v_cvt_pk_bf16_f32 %s, %s, %s" % (v(4 + d), v(8 + 2 * d), v(9 + 2 * d)))
    a("buffer_store_dwordx4 v[4:7], v2, %s, 0 offen" % s(R_X, 4))
    if o.stamps:
        a("s_waitcnt vmcnt(0)")
        st.stamp()
        st.flush(koff=1 << 20)
    a.label(o.end)
    a("s_endpgm")


def empty_kernel(a, name):
    a.raw(".globl %s\n.p2align 8\n.type %s,@function\n%s:" % (name, name, name))
    a("s_endpgm")


def gen(o):
    a = Asm()
    o.main_name = "main_kernel"
    o.red_name = "reduce_kernel"
    hdr = HEADER
    hdr += "; @launch kernel=%s grid=(256,1,1) block=(512,1,1) lds=%d\n" % (o.main_name, LDS_TOTAL)
    hdr += "; @launch kernel=%s grid=(288,1,1) block=(256,1,1) lds=0\n" % (o.red_name)
    for i in range(o.empties):
        hdr += "; @launch kernel=empty_kernel grid=(256,1,1) block=(64,1,1) lds=0\n"
    a.raw(hdr + '.amdgcn_target "amdgcn-amd-amdhsa--gfx950"\n.text')
    main_kernel(a, o)
    reduce_kernel(a, o)
    if o.empties:
        empty_kernel(a, "empty_kernel")
    a.raw('.section .rodata,"a"')
    a.raw(kernel_desc(o.main_name, 256, 102))
    a.raw(kernel_desc(o.red_name, 80, 102))
    if o.empties:
        a.raw(kernel_desc("empty_kernel", 8, 16))
    return a.text()


def parse(argv):
    ap = argparse.ArgumentParser()
    ap.add_argument("-o", default="k1.s")
    ap.add_argument("--stamps", type=int, default=0)
    ap.add_argument("--rot", type=int, default=0)
    ap.add_argument("--nt_w", type=int, default=0)
    ap.add_argument("--nt_kv", type=int, default=0)
    ap.add_argument("--kv_at", type=int, default=-1)
    ap.add_argument("--maxout", type=int, default=14)
    ap.add_argument("--rate", type=int, default=3)
    ap.add_argument("--bpos", type=int, default=1)
    ap.add_argument("--bpos2", type=int, default=13)
    ap.add_argument("--opos", type=int, default=3)
    ap.add_argument("--na2", type=int, default=4)
    ap.add_argument("--empties", type=int, default=0)
    ap.add_argument("--st_flags", default="")
    ap.add_argument("--ld_flags", default="")
    return ap.parse_args(argv)


if __name__ == "__main__":
    o = parse(sys.argv[1:])
    open(o.o, "w").write(gen(o))
    print("wrote", o.o)
```

```python
import sys, argparse, math, struct
from asmlib import Asm, v, s, kernel_desc, HEADER

NAME = "concat_heads__gqa_block_cached__gqa_block_cached__near_ridge"
STAMP_OFF = 200 << 20

W0 = 0
X0 = 131072
LDS_TOTAL = 163840
PART = 73728
NSLOT = 4
ST_KV = 9
NST = 19

S_WAVE, S_BR, S_KVH, S_BP, S_T = 3, 4, 5, 6, 7
R_X, R_WQ, R_WO, R_K, R_V, R_P, R_ST = 8, 12, 16, 20, 24, 28, 32
KA = 36
PX, PK, PV, PWQ, PWO = KA, KA + 2, KA + 4, KA + 6, KA + 8
POUT, PDBG, PWS = KA + 20, KA + 22, KA + 24
S_T1, S_T2, S_T3, S_T4 = 88, 89, 90, 91
S_BL, S_HH, S_C, S_LW = 92, 93, 94, 95
S_ROT = 62
S_STAMP = 64
NSTAMP = 12
S_CY0, S_CY1 = 96, 98


def srd(a, r, base, off_s, nbytes):
    if off_s is None:
        a("s_mov_b32 %s, %s" % (s(r), s(base)))
        a("s_mov_b32 %s, %s" % (s(r + 1), s(base + 1)))
    else:
        a("s_add_u32 %s, %s, %s" % (s(r), s(base), s(off_s)))
        a("s_addc_u32 %s, %s, 0" % (s(r + 1), s(base + 1)))
    a("s_mov_b32 %s, 0x%x" % (s(r + 2), nbytes))
    a("s_mov_b32 %s, 0x00020000" % s(r + 3))


class Stamper:
    def __init__(self, a, on, n=0):
        self.a, self.on, self.n = a, on, n

    def stamp(self):
        if self.on:
            assert self.n < NSTAMP
            self.a("s_memrealtime %s" % s(S_STAMP + 2 * self.n, 2))
            self.n += 1

    def flush(self, koff=0):
        a = self.a
        if not self.on:
            return
        a("s_memtime %s" % s(S_CY1, 2))
        a("s_waitcnt lgkmcnt(0)")
        a("s_sub_u32 %s, %s, %s" % (s(S_CY1), s(S_CY1), s(S_CY0)))
        a("s_mov_b32 %s, 0" % s(S_CY1 + 1))
        a("s_lshl_b32 %s, s2, 3" % s(S_T1))
        a("s_add_u32 %s, %s, %s" % (s(S_T1), s(S_T1), s(S_WAVE)))
        a("s_lshl_b32 %s, %s, 7" % (s(S_T1), s(S_T1)))
        a("s_add_u32 %s, %s, 0x%x" % (s(S_T1), s(S_T1), STAMP_OFF + koff))
        srd(a, R_ST, PWS, S_T1, 128)
        a("v_mov_b32 v1, 0")
        for i in range(16):
            src = S_STAMP + 2 * i if i < self.n else (S_CY1 if i == 15 else None)
            a("v_mov_b32 v2, %s" % (s(src) if src else "0"))
            a("v_mov_b32 v3, %s" % (s(src + 1) if src else "0"))
            a("buffer_store_dwordx2 v[2:3], v1, %s, 0 offen offset:%d" % (s(R_ST, 4), 8 * i))
            a("s_nop 1")


class Pipe:
    def __init__(self, a, maxout=14):
        self.a = a
        self.q = []
        self.maxout = maxout
        self.ninstr = 0
        self.skip = []
        self.fill = []

    def emit(self, txt):
        if self.skip:
            txt = "\n".join(x for x in txt.split("\n") if not any(k in x for k in self.skip))
        self.a(txt)
        self.ninstr += len([x for x in txt.split("\n") if x.strip()])

    def nop(self, n):
        while n > 0:
            k = min(n, 16)
            self.emit("s_nop %d" % (k - 1))
            self.ninstr += k - 1
            n -= k

    def lds(self, txt, tag):
        self.emit(txt)
        self.q.append(tag)

    def need(self, tags):
        idx = -1
        for i, t in enumerate(self.q):
            if t in tags:
                idx = i
        if idx >= 0:
            n = len(self.q) - idx - 1
            assert n <= 15
            self.emit("s_waitcnt lgkmcnt(%d)" % n)
            self.q = self.q[idx + 1:]

    def drain(self):
        self.emit("s_waitcnt lgkmcnt(0)")
        self.q = []

    def do_fill(self, items, f):
        if f.get("after") is not None:
            d = self.ninstr - items[f["after"]]["at"]
            if d < 12:
                self.nop(12 - d)
        if f.get("tag"):
            self.lds(f["txt"], f["tag"])
        elif f.get("fn"):
            f["fn"](self)
        else:
            self.emit(f["txt"])
        if f.get("id"):
            self.done.add(f["id"])

    def run(self, items, reads, fills, rate, frate):
        ri = 0
        fi = 0
        issued = set()
        self.done = set()

        def issue_one():
            nonlocal ri
            r = reads[ri]
            if r.get("pre"):
                r["pre"](self)
            self.lds(r["txt"], r["tag"])
            issued.add(r["tag"])
            ri += 1

        def fill_until(fid):
            nonlocal fi
            while fid not in self.done:
                self.do_fill(items, fills[fi])
                fi += 1

        while ri < len(reads) and reads[ri]["gate"] < 0 and len(self.q) < self.maxout:
            issue_one()
        for i, it in enumerate(items):
            for fid in it.get("fneeds", []):
                if fid not in self.done:
                    fill_until(fid)
                    self.nop(2)
            for t in it["needs"]:
                while t not in issued:
                    assert reads[ri]["gate"] < i, (i, reads[ri])
                    for fid in reads[ri].get("fneeds", []):
                        fill_until(fid)
                    issue_one()
            self.need(set(it["needs"]))
            self.emit(it["mfma"])
            it["at"] = self.ninstr
            n = 0
            while ri < len(reads) and reads[ri]["gate"] <= i and n < it.get("rate", rate) and (
                    len(self.q) < self.maxout or reads[ri].get("pre")) and all(
                        fid in self.done for fid in reads[ri].get("fneeds", [])):
                issue_one()
                n += 1
            for t in it.get("issue", []):
                while t not in issued:
                    assert reads[ri]["gate"] <= i
                    if len(self.q) >= 15:
                        self.need({self.q[0]})
                    issue_one()
            n = 0
            while fi < len(fills) and fills[fi]["gate"] <= i and n < it.get("frate", frate):
                if fills[fi].get("after") is not None and not fills[fi].get("force") and (
                        self.ninstr - items[fills[fi]["after"]]["at"] < 12):
                    break
                self.do_fill(items, fills[fi])
                fi += 1
                n += 1
            for p in it.get("post", []):
                p(self)
        while fi < len(fills):
            self.do_fill(items, fills[fi])
            fi += 1
        assert ri == len(reads)


def barrier_plan(o):
    ahead = NSLOT - 1 if o.mode == "drain" else NSLOT - 2
    first = list(range(ahead + (0 if o.mode == "drain" else 0) + 1)) if o.mode == "drain" else list(range(NSLOT - 1))
    pro = list(range(NSLOT))
    nxt = NSLOT
    plan = []

    def freed(upto):
        nonlocal nxt
        out = []
        while nxt < NST and nxt - NSLOT <= upto:
            out.append(nxt)
            nxt += 1
        return out
    lag = 1 if o.mode == "drain" else 2
    for sg in range(0, ST_KV + 1):
        plan.append(("B%d" % sg, sg, freed(sg - lag)))
    plan.append(("B9x", ST_KV + 1, freed(ST_KV)))
    plan.append(("BO", None, []))
    for sg in range(ST_KV + 2, NST):
        plan.append(("B%d" % sg, sg, freed(sg - lag)))
    return pro, plan


def stage_off(a, sidx, mult, dst, rot):
    if not rot:
        a("s_mov_b32 %s, %d" % (s(dst), sidx * mult))
        return 1
    a("s_add_u32 %s, %s, %d" % (s(dst), s(S_ROT), sidx))
    a("s_cmp_ge_u32 %s, 9" % s(dst))
    a("s_cselect_b32 %s, 9, 0" % s(S_T))
    a("s_sub_u32 %s, %s, %s" % (s(dst), s(dst), s(S_T)))
    a("s_mul_i32 %s, %s, %d" % (s(dst), s(dst), mult))
    return 5


def main_kernel(a, o):
    st = Stamper(a, o.stamps)
    name = o.main_name
    a.raw(".globl %s\n.p2align 8\n.type %s,@function\n%s:" % (name, name, name))
    o.end = "L_main_end"
    a("s_cmp_ge_u32 s2, 256")
    a("s_cbranch_scc1 %s" % o.end)
    a("s_load_dwordx16 %s, s[0:1], 0" % s(KA, 16))
    a("s_load_dwordx4 %s, s[0:1], 64" % s(KA + 16, 4))
    a("s_load_dwordx4 %s, s[0:1], 80" % s(KA + 20, 4))
    a("s_load_dwordx2 %s, s[0:1], 96" % s(KA + 24, 2))
    st.stamp()
    if o.stamps:
        a("s_memtime %s" % s(S_CY0, 2))
    a("v_lshrrev_b32 v1, 6, v0")
    a("v_and_b32 v0, 63, v0")
    a("v_readfirstlane_b32 %s, v1" % s(S_WAVE))
    a("s_lshr_b32 %s, s2, 2" % s(S_BR))
    a("s_and_b32 %s, %s, 1" % (s(S_BR), s(S_BR)))
    a("s_and_b32 %s, s2, 3" % s(S_KVH))
    a("s_lshl_b32 %s, %s, 2" % (s(S_KVH), s(S_KVH)))
    a("s_lshr_b32 %s, s2, 6" % s(S_T))
    a("s_add_u32 %s, %s, %s" % (s(S_KVH), s(S_KVH), s(S_T)))
    a("s_lshr_b32 %s, s2, 3" % s(S_BP))
    a("s_and_b32 %s, %s, 7" % (s(S_BP), s(S_BP)))
    if o.rot:
        a("s_mul_i32 %s, %s, %d" % (s(S_ROT), s(S_BP), o.rot))
        a("s_mul_i32 %s, %s, 57" % (s(S_T), s(S_ROT)))
        a("s_lshr_b32 %s, %s, 9" % (s(S_T), s(S_T)))
        a("s_mul_i32 %s, %s, 9" % (s(S_T), s(S_T)))
        a("s_sub_u32 %s, %s, %s" % (s(S_ROT), s(S_ROT), s(S_T)))
    OX, OWQ, OWO, OKV = 63, 100, 101, R_ST
    a("s_mul_i32 %s, %s, %d" % (s(OX), s(S_BP), 64 * 1152))
    a("s_lshl_b32 %s, %s, 9" % (s(OWQ), s(S_KVH)))
    a("s_mul_i32 %s, %s, %d" % (s(OWO), s(S_KVH), 256 * 1152))
    a("s_lshl_b32 %s, %s, 5" % (s(S_T), s(S_BP)))
    a("s_add_u32 %s, %s, %s" % (s(S_T), s(S_T), s(S_KVH)))
    a("s_lshl_b32 %s, %s, 13" % (s(OKV), s(S_T)))
    a("s_cmp_ge_u32 %s, 3" % s(S_WAVE))
    a("s_cbranch_scc1 L_compute")
    a("s_cmp_eq_u32 %s, 0" % s(S_WAVE))
    a("s_cbranch_scc0 L_loader")

    def ptrs():
        a("s_waitcnt lgkmcnt(0)")
        a("s_cmp_eq_u32 %s, 0" % s(S_BR))
        for i in range(5):
            a("s_cselect_b64 %s, %s, %s" % (s(KA + 2 * i, 2), s(KA + 2 * i, 2), s(KA + 10 + 2 * i, 2)))
        srd(a, R_WQ, PWQ, OWQ, 575 * 8192 + 512)
        srd(a, R_X, PX, OX, 64 * 1152)
        srd(a, R_K, PK, OKV, 131072 + 8192)
        srd(a, R_V, PV, OKV, 131072 + 8192)
        srd(a, R_WO, PWO, OWO, 256 * 1152)

    service(a, o, Stamper(a, o.stamps, 1 if o.stamps else 0), ptrs)
    a("s_endpgm")
    a.label("L_loader")
    loader(a, o, Stamper(a, o.stamps, 1 if o.stamps else 0), ptrs)
    a("s_endpgm")
    a.label("L_compute")
    compute(a, o, Stamper(a, o.stamps, 1 if o.stamps else 0))
    a.label(o.end)
    a("s_endpgm")
    a.label("L_code_end")


def service(a, o, st, ptrs):
    VQ, VX, VKV, VO, VC = 4, 5, 6, 7, 8
    nt = " nt" if o.nt else ""
    a("v_lshrrev_b32 v1, 5, v0")
    a("v_lshlrev_b32 v1, 6, v1")
    a("v_bfe_u32 v2, v0, 2, 3")
    a("v_add_u32 v1, v1, v2")
    a("s_lshl_b32 %s, %s, 3" % (s(S_T), s(S_BP)))
    a("v_add_u32 v1, %s, v1" % s(S_T))
    a("v_lshlrev_b32 v1, 13, v1")
    a("v_and_b32 v2, 3, v0")
    a("v_lshl_add_u32 %s, v2, 7, v1" % v(VQ))
    a("s_lshr_b32 %s, s2, 6" % s(S_T))
    a("s_lshl_b32 %s, %s, 4" % (s(S_T), s(S_T)))
    a("v_and_b32 v1, 15, v0")
    a("v_add_u32 v1, %s, v1" % s(S_T))
    a("v_mul_u32_u24 v1, 1152, v1")
    a("v_lshrrev_b32 v2, 4, v0")
    a("v_lshl_add_u32 %s, v2, 7, v1" % v(VX))
    a("v_lshlrev_b32 %s, 7, v0" % v(VKV))
    if o.wo_order == "chunk":
        a("s_lshl_b32 %s, %s, 5" % (s(S_T), s(S_BP)))
        a("v_and_b32 v1, 31, v0")
        a("v_add_u32 v1, %s, v1" % s(S_T))
        a("v_mul_u32_u24 v1, 1152, v1")
        a("v_lshrrev_b32 v2, 5, v0")
        a("v_lshl_add_u32 %s, v2, 7, v1" % v(VO))
        wo_step = 256
    else:
        a("s_mul_i32 %s, %s, %d" % (s(S_T), s(S_BP), 32 * 1152))
        a("v_add_u32 %s, %s, %s" % (v(VO), s(S_T), v(VKV)))
        wo_step = 8192
    ptrs()
    st.stamp()
    lst = []
    if o.pf_code:
        a("s_getpc_b64 %s" % s(R_P, 2))
        a.label("L_pc")
        a("s_mov_b32 %s, L_code_end-L_pc" % s(R_P + 2))
        a("s_mov_b32 %s, 0x00020000" % s(R_P + 3))
        for i in range(o.pf_code):
            lst.append((VKV, R_P, i * 8192, ""))
    Q = [(VQ, R_WQ, i * 1048576, nt) for i in range(5)]
    X = [(VX, R_X, i * 512, " nt" if o.nt_x else "") for i in range(3)]
    K = [(VKV, R_K, i * 131072, nt) for i in range(2)]
    V = [(VKV, R_V, i * 131072, nt) for i in range(2)]
    O = [(VO, R_WO, i * wo_step, nt) for i in range(5)]
    d = dict(q=Q, x=X, k=K, v=V, o=O)
    for tok in o.pf_list.split(","):
        if tok:
            lst.append(d[tok[0]][int(tok[1:])])
    for i, (vo, r, off, fl) in enumerate(lst):
        if i >= o.pf_win:
            a("s_waitcnt vmcnt(%d)" % (o.pf_win - 1))
        a("s_mov_b32 %s, %d" % (s(S_T), off))
        a("buffer_load_dword %s, %s, %s, %s offen%s" % (v(16 + i), v(vo), s(r, 4), s(S_T), fl))
    st.stamp()
    if o.stamps:
        a("s_waitcnt vmcnt(0)")
        st.stamp()
        st.flush()


def loader(a, o, st, ptrs):
    NL = 2
    LW = S_LW
    VWQ, VX, VWO, VK0, VK1, VV = 10, 11, 12, 13, 14, 15
    a("s_sub_u32 %s, %s, 1" % (s(LW), s(S_WAVE)))
    a("v_lshrrev_b32 v1, 5, v0")
    a("s_lshl_b32 %s, %s, 1" % (s(S_T), s(LW)))
    a("v_add_u32 v2, %s, v1" % s(S_T))
    a("v_lshlrev_b32 v2, 2, v2")
    a("v_and_b32 v3, 31, v0")
    a("v_xor_b32 v2, v2, v3")
    a("v_lshlrev_b32 v2, 4, v2")
    a("v_lshl_add_u32 v2, v1, 13, v2")
    a("s_lshl_b32 %s, %s, 14" % (s(S_T), s(LW)))
    a("v_add_u32 %s, %s, v2" % (v(VWQ), s(S_T)))
    a("v_lshrrev_b32 v1, 3, v0")
    a("s_lshl_b32 %s, %s, 3" % (s(S_T), s(LW)))
    a("v_add_u32 v1, %s, v1" % s(S_T))
    a("v_mul_u32_u24 v1, 1152, v1")
    a("v_lshrrev_b32 v2, 4, v0")
    a("s_lshl_b32 %s, %s, 2" % (s(S_T), s(LW)))
    a("v_add_u32 v2, %s, v2" % s(S_T))
    a("v_and_b32 v3, 7, v0")
    a("v_xor_b32 v2, v2, v3")
    a("v_lshl_add_u32 %s, v2, 4, v1" % v(VX))
    a("v_lshrrev_b32 v2, 2, v0")
    a("v_and_b32 v2, 4, v2")
    a("v_xor_b32 v2, v2, v3")
    a("v_lshl_add_u32 %s, v2, 4, v1" % v(VWO))
    a("v_lshrrev_b32 v1, 4, v0")
    a("v_and_b32 v3, 15, v0")
    a("v_xor_b32 v2, v1, v3")
    a("v_lshlrev_b32 v2, 4, v2")
    a("v_lshl_add_u32 v2, v1, 8, v2")
    a("s_lshl_b32 %s, %s, 6" % (s(S_T), s(LW)))
    a("v_xor_b32 v2, %s, v2" % s(S_T))
    a("s_lshl_b32 %s, %s, 10" % (s(S_T4), s(LW)))
    a("v_add_u32 %s, %s, v2" % (v(VK0), s(S_T4)))
    a("v_xor_b32 %s, 128, %s" % (v(VK1), v(VK0)))
    a("v_lshlrev_b32 v2, 2, v1")
    a("v_xor_b32 v2, v2, v3")
    a("v_lshlrev_b32 v2, 4, v2")
    a("v_lshl_add_u32 v2, v1, 8, v2")
    a("v_add_u32 %s, %s, v2" % (v(VV), s(S_T4)))
    ptrs()
    st.stamp()
    nt = " nt" if o.nt else ""
    ntx = " nt" if o.nt_x else ""
    cnt = {}

    def dma(vo, r, soff, lds, fl, sprev):
        a("s_add_u32 m0, %s, %d" % (s(S_T4), lds))
        if sprev is None:
            a("s_nop 0")
        else:
            a("s_add_u32 %s, %s, %d" % (s(soff), s(soff), sprev))
        a("buffer_load_dwordx4 %s, %s, %s offen%s lds" % (v(vo), s(r, 4), s(soff), fl))

    def issue(sg):
        slot = sg % NSLOT
        n = 0
        if o.noload:
            cnt[sg] = 0
            return
        if sg < 9:
            stage_off(a, sg, 128, S_T2, o.rot)
            a("s_lshl_b32 %s, %s, 12" % (s(S_T1), s(S_T2)))
            for i in range(4):
                dma(VX, R_X, S_T2, X0 + slot * 8192 + i * 2048, ntx, 18432 if i else None)
            for i in range(16):
                dma(VWQ, R_WQ, S_T1, W0 + slot * 32768 + i * 2048, nt, 32768 if i else None)
            n = 20
        elif sg == ST_KV:
            for t, r in enumerate((R_K, R_V)):
                a("s_mov_b32 %s, 0" % s(S_T1))
                for b in range(2):
                    for ii in range(4):
                        vo = (VK0 + (ii & 1)) if t == 0 else VV
                        step = None if (b == 0 and ii == 0) else (2048 if ii else 131072 - 3 * 2048)
                        dma(vo, r, S_T1, W0 + slot * 32768 + t * 16384 + b * 8192 + ii * 2048, nt, step)
            n = 16
        else:
            stage_off(a, sg - 10, 128, S_T1, o.rot)
            for i in range(16):
                dma(VWO, R_WO, S_T1, W0 + slot * 32768 + i * 2048, nt, 18432 if i else None)
            n = 16
        cnt[sg] = n

    pro, plan = barrier_plan(o)
    seq = []

    def wait_for(sg):
        k = seq.index(sg)
        n = sum(cnt[x] for x in seq[k + 1:])
        assert n <= 63
        a("s_waitcnt vmcnt(%d)" % n)

    for sg in pro:
        if sum(cnt[x] for x in seq) + 20 > 63:
            wait_for(seq[0])
        issue(sg)
        seq.append(sg)
    st.stamp()
    landed = set()
    for nm, need, nxt in plan:
        if need is not None:
            wait_for(need)
        if nm in ("B0", "B1", "B4", "B8", "B9", "B9x", "B12", "B15", "B18"):
            st.stamp()
        a("s_barrier")
        for sg in nxt:
            out = sum(cnt[x] for x in seq[seq.index(need) + 1:]) if need is not None else 0
            if out + 20 > 63:
                wait_for(seq[seq.index(need) + 1])
            issue(sg)
            seq.append(sg)
    st.flush()


def compute(a, o, st):
    BL, HH = S_BL, S_HH
    CW = S_LW
    a("s_sub_u32 %s, %s, 3" % (s(CW), s(S_WAVE)))
    a("s_and_b32 %s, %s, 1" % (s(BL), s(CW)))
    a("s_lshr_b32 %s, %s, 1" % (s(HH), s(CW)))

    VA = 8
    VX = 16
    VK = 20
    VV = 21
    VOW, VOR = 25, 26
    VWO = 27
    VP = 31
    T0, T1, T2, T3 = 32, 33, 34, 35
    VH, VR, VTR = 36, 37, 38
    BF = 48
    ACC = 64
    AF = 128
    PF = 160
    QB = 168
    SA = 200
    KF = 216
    a("v_lshrrev_b32 %s, 5, v0" % v(VH))
    a("v_bfe_u32 %s, v0, 2, 2" % v(VR))
    a("v_and_b32 %s, 1, v0" % v(T0))
    a("v_lshlrev_b32 %s, 4, %s" % (v(T0), v(T0)))
    a("v_and_b32 %s, 2, v0" % v(T1))
    a("v_lshl_add_u32 %s, %s, 2, %s" % (v(T0), v(T1), v(T0)))
    a("v_and_b32 %s, 16, v0" % v(T1))
    a("v_lshl_add_u32 %s, %s, 1, %s" % (v(VTR), v(T1), v(T0)))
    a("v_lshl_add_u32 %s, %s, 3, %s" % (v(T2), v(VH), v(VR)))
    a("v_lshl_add_u32 %s, %s, 9, %s" % (v(T0), v(T2), v(VTR)))
    a("s_lshl_b32 %s, %s, 8" % (s(S_T), s(HH)))
    a("v_add_u32 %s, %s, %s" % (v(T0), s(S_T), v(T0)))
    for t in range(4):
        a("v_xor_b32 %s, %d, %s" % (v(T1), t, v(VR)))
        a("v_lshl_add_u32 %s, %s, 6, %s" % (v(VA + t), v(T1), v(T0)))
        a("v_add_u32 %s, 0x10000, %s" % (v(VA + 4 + t), v(VA + t)))
    KVB = W0 + (ST_KV % NSLOT) * 32768
    a("v_lshl_add_u32 %s, %s, 8, %s" % (v(T0), v(T2), v(VTR)))
    a("s_lshl_b32 %s, %s, 13" % (s(S_T), s(BL)))
    a("s_add_u32 %s, %s, %d" % (s(S_T), s(S_T), KVB + 16384))
    a("v_add_u32 %s, %s, %s" % (v(T0), s(S_T), v(T0)))
    for t in range(4):
        a("v_xor_b32 %s, %d, %s" % (v(T1), t, v(VR)))
        a("v_lshl_add_u32 %s, %s, 6, %s" % (v(VV + t), v(T1), v(T0)))
    a("v_lshl_add_u32 %s, %s, 7, %s" % (v(T0), v(T2), v(VTR)))
    a("v_lshrrev_b32 %s, 1, %s" % (v(T1), v(VR)))
    a("v_xor_b32 %s, %s, %s" % (v(T1), s(HH), v(T1)))
    a("v_lshl_add_u32 %s, %s, 6, %s" % (v(T0), v(T1), v(T0)))
    a("s_lshl_b32 %s, %s, 14" % (s(S_T), s(HH)))
    a("v_add_u32 %s, %s, %s" % (v(VWO), s(S_T), v(T0)))
    a("v_xor_b32 %s, 0x4000, %s" % (v(VWO + 1), v(VWO)))
    a("v_add_u32 %s, 0x10000, %s" % (v(VWO + 2), v(VWO)))
    a("v_add_u32 %s, 0x10000, %s" % (v(VWO + 3), v(VWO + 1)))
    a("v_and_b32 %s, 31, v0" % v(T0))
    a("v_bfe_u32 %s, v0, 1, 3" % v(T1))
    a("v_xor_b32 %s, %s, %s" % (v(T1), v(T1), v(VH)))
    a("v_lshlrev_b32 %s, 4, %s" % (v(T1), v(T1)))
    a("v_lshl_add_u32 %s, %s, 7, %s" % (v(T1), v(T0), v(T1)))
    a("s_lshl_b32 %s, %s, 12" % (s(S_T), s(BL)))
    a("s_add_u32 %s, %s, %d" % (s(S_T), s(S_T), X0))
    a("v_add_u32 %s, %s, %s" % (v(VX), s(S_T), v(T1)))
    for j in range(1, 4):
        a("v_xor_b32 %s, %d, %s" % (v(VX + j), 32 * j, v(VX)))
    a("v_and_b32 %s, 0x13, %s" % (v(T1), v(T0)))
    a("v_and_b32 %s, 4, %s" % (v(T2), v(T0)))
    a("v_lshl_add_u32 %s, %s, 1, %s" % (v(T1), v(T2), v(T1)))
    a("v_and_b32 %s, 8, %s" % (v(T2), v(T0)))
    a("v_lshrrev_b32 %s, 1, %s" % (v(T2), v(T2)))
    a("v_add_u32 %s, %s, %s" % (v(T1), v(T1), v(T2)))
    a("v_and_b32 %s, 15, %s" % (v(T2), v(T1)))
    a("v_xor_b32 %s, %s, %s" % (v(T2), v(T2), v(VH)))
    a("v_lshlrev_b32 %s, 4, %s" % (v(T2), v(T2)))
    a("v_lshl_add_u32 %s, %s, 8, %s" % (v(T1), v(T1), v(T2)))
    a("s_lshl_b32 %s, %s, 13" % (s(S_T), s(BL)))
    a("s_add_u32 %s, %s, %d" % (s(S_T), s(S_T), KVB))
    a("v_add_u32 %s, %s, %s" % (v(VK), s(S_T), v(T1)))
    VK2 = 40
    for m in range(1, 8):
        a("v_xor_b32 %s, %d, %s" % (v(VK2 + m - 1), 32 * m, v(VK)))
    a("s_lshl_b32 %s, %s, 13" % (s(S_T), s(CW)))
    a("s_add_u32 %s, %s, %d" % (s(S_T), s(S_T), X0))
    a("v_lshl_add_u32 %s, v0, 4, %s" % (v(VOW), s(S_T)))
    a("v_xor_b32 %s, 0x4000, %s" % (v(VOR), v(VOW)))
    a("s_mul_i32 %s, %s, 18" % (s(S_T), s(BL)))
    a("s_add_u32 %s, %s, %s" % (s(S_T), s(S_T), s(HH)))
    a("s_lshl_b32 %s, %s, 11" % (s(S_T), s(S_T)))
    a("v_lshl_add_u32 %s, v0, 4, %s" % (v(VP), s(S_T)))
    cbits = struct.unpack("<I", struct.pack("<f", (128 ** -0.5) * math.log2(math.e)))[0]
    a("s_mov_b32 %s, 0x%x" % (s(S_C), cbits))
    a("s_lshl_b32 %s, %s, 3" % (s(S_T), s(S_BR)))
    a("s_add_u32 %s, %s, %s" % (s(S_T), s(S_T), s(S_BP)))
    a("s_lshl_b32 %s, %s, 4" % (s(S_T), s(S_T)))
    a("s_add_u32 %s, %s, %s" % (s(S_T), s(S_T), s(S_KVH)))
    a("s_mul_i32 %s, %s, %d" % (s(S_T), s(S_T), PART))
    a("s_waitcnt lgkmcnt(0)")
    srd(a, R_P, PWS, S_T, PART)
    if o.prio:
        a("s_setprio %d" % o.prio)

    p = Pipe(a, o.maxout)
    p.skip = [x for x in o.skip.split(",") if x]
    stamps = set(o.cstamps.split(","))

    def barrier(nm, drain):
        def f(pp):
            if nm in stamps and o.stamps:
                st.stamp()
                pp.drain()
            elif drain:
                pp.drain()
            pp.emit("s_barrier")
        return f
    dr = o.mode == "drain"

    def cvt(dst, src):
        return "v_cvt_pk_bf16_f32 %s, %s, %s" % (v(dst), v(src), v(src + 1))

    items, reads, fills = [], [], []
    NA, NB = 8, o.nb
    an = bn = 0
    last_use_a = [-1] * NA
    last_use_b = [-1] * NB
    for sg in range(9):
        slot = sg % NSLOT
        for j in range(4):
            base_i = len(items)
            sgate = -1 if sg == 0 else (sg * 16 - 4 + o.bpos)
            bb = bn % NB; bn += 1
            rd = dict(txt="ds_read_b128 %s, %s offset:%d" % (v(BF + 4 * bb, 4), v(VX + j), slot * 8192),
                      tag=("B", sg, j), gate=max(sgate, last_use_b[bb]))
            if j == 0:
                rd["pre"] = barrier("B%d" % sg, dr)
            reads.append(rd)
            last_use_b[bb] = base_i + 3
            for t in range(4):
                ab = an % NA; an += 1
                g = max(sgate, last_use_a[ab])
                va = VA + t + (4 if slot >= 2 else 0)
                off = (slot & 1) * 32768 + j * 8192
                for i in range(2):
                    reads.append(dict(txt="ds_read_b64_tr_b16 %s, %s offset:%d" % (
                        v(AF + 4 * ab + 2 * i, 2), v(va), off + i * 2048), tag=("A", sg, j, t, i), gate=g))
                last_use_a[ab] = base_i + t
                first = (sg == 0 and j == 0)
                items.append(dict(
                    mfma="v_mfma_f32_32x32x16_bf16 %s, %s, %s, %s" % (
                        v(ACC + 16 * t, 16), v(AF + 4 * ab, 4), v(BF + 4 * bb, 4),
                        "0" if first else v(ACC + 16 * t, 16)),
                    needs=[("B", sg, j), ("A", sg, j, t, 0), ("A", sg, j, t, 1)],
                    rate=3 if t == 3 else o.rate))
    n_p1 = len(items)
    kgate = 9 * 16 - 4 + o.bpos
    for m in range(8):
        rd = dict(txt="ds_read_b128 %s, %s" % (v(KF + 4 * m, 4), v(VK if m == 0 else VK2 + m - 1)),
                  tag=("K", m), gate=kgate)
        if m == 0:
            rd["pre"] = barrier("B9", dr)
        reads.append(rd)
    for t in range(4):
        for i in range(8):
            fills.append(dict(txt=cvt(QB + 8 * t + i, ACC + 16 * t + 2 * i), gate=n_p1 - 1, after=n_p1 - 4 + t,
                              force=True, id=("Q", t, i)))
    for m in range(8):
        items.append(dict(mfma="v_mfma_f32_32x32x16_bf16 %s, %s, %s, %s" % (
            v(SA, 16), v(KF + 4 * m, 4), v(QB + 4 * m, 4), "0" if m == 0 else v(SA, 16)),
            needs=[("K", m)], fneeds=[("Q", m // 2, 4 * (m & 1) + 3)], frate=6, rate=2))
    items[n_p1 - 1]["frate"] = 6
    for t in range(4):
        for m in range(2):
            for i in range(2):
                reads.append(dict(txt="ds_read_b64_tr_b16 %s, %s offset:%d" % (
                    v(AF + 8 * t + 4 * m + 2 * i, 2), v(VV + t), m * 4096 + i * 1024),
                    tag=("V", t, m, i), gate=n_p1 - 1))
    n_s = len(items)
    vtags = [("V", t, m, i) for t in range(4) for m in range(2) for i in range(2)]

    def softmax(pp):
        e = pp.emit
        barrier("B9x", True)(pp)
        d = pp.ninstr - items[n_s - 1]["at"]
        if d < 12:
            pp.nop(12 - d)
        S = SA
        e("v_max3_f32 %s, %s, %s, %s" % (v(T0), v(S), v(S + 1), v(S + 2)))
        e("v_max3_f32 %s, %s, %s, %s" % (v(T1), v(S + 3), v(S + 4), v(S + 5)))
        e("v_max3_f32 %s, %s, %s, %s" % (v(T2), v(S + 6), v(S + 7), v(S + 8)))
        e("v_max3_f32 %s, %s, %s, %s" % (v(T3), v(S + 9), v(S + 10), v(S + 11)))
        e("v_max3_f32 %s, %s, %s, %s" % (v(T0), v(T0), v(S + 12), v(S + 13)))
        e("v_max3_f32 %s, %s, %s, %s" % (v(T1), v(T1), v(S + 14), v(S + 15)))
        e("v_max3_f32 %s, %s, %s, %s" % (v(T0), v(T0), v(T2), v(T3)))
        e("v_max_f32 %s, %s, %s" % (v(T0), v(T0), v(T1)))
        e("v_mov_b32 %s, %s" % (v(T1), v(T0)))
        e("s_nop 1")
        e("v_permlane32_swap_b32 %s, %s" % (v(T0), v(T1)))
        e("s_nop 1")
        e("v_max_f32 %s, %s, %s" % (v(T0), v(T0), v(T1)))
        e("v_mul_f32 %s, %s, %s" % (v(T0), s(S_C), v(T0)))
        for i in range(16):
            e("v_fma_f32 %s, %s, %s, -%s" % (v(S + i), v(S + i), s(S_C), v(T0)))
            if i >= 1:
                e("v_exp_f32 %s, %s" % (v(S + i - 1), v(S + i - 1)))
        e("v_exp_f32 %s, %s" % (v(S + 15), v(S + 15)))
        e("v_add_f32 %s, %s, %s" % (v(T0), v(S), v(S + 1)))
        e("v_add_f32 %s, %s, %s" % (v(T1), v(S + 2), v(S + 3)))
        e("v_add_f32 %s, %s, %s" % (v(T2), v(S + 4), v(S + 5)))
        e("v_add_f32 %s, %s, %s" % (v(T3), v(S + 6), v(S + 7)))
        for i in range(8):
            e("v_add_f32 %s, %s, %s" % (v(T0 + (i & 3)), v(T0 + (i & 3)), v(S + 8 + i)))
        e("v_add_f32 %s, %s, %s" % (v(T0), v(T0), v(T1)))
        e("v_add_f32 %s, %s, %s" % (v(T2), v(T2), v(T3)))
        e("v_add_f32 %s, %s, %s" % (v(T0), v(T0), v(T2)))
        e("v_mov_b32 %s, %s" % (v(T1), v(T0)))
        e("s_nop 1")
        e("v_permlane32_swap_b32 %s, %s" % (v(T0), v(T1)))
        e("s_nop 1")
        e("v_add_f32 %s, %s, %s" % (v(T0), v(T0), v(T1)))
        e("v_rcp_f32 %s, %s" % (v(T0), v(T0)))
        e("s_nop 0")
        for i in range(16):
            e("v_mul_f32 %s, %s, %s" % (v(S + i), v(S + i), v(T0)))
            if i & 1 and i > 1:
                e(cvt(PF + (i >> 1) - 1, S + i - 3))
        e(cvt(PF + 7, S + 14))
        e("s_nop 1")
    items[n_s - 1]["post"] = [softmax]
    items[n_s - 1]["issue"] = vtags
    OB = QB
    for t in range(4):
        for m in range(2):
            items.append(dict(mfma="v_mfma_f32_32x32x16_bf16 %s, %s, %s, %s" % (
                v(ACC + 16 * t, 16), v(AF + 8 * t + 4 * m, 4), v(PF + 4 * m, 4),
                "0" if m == 0 else v(ACC + 16 * t, 16)),
                needs=[("V", t, m, 0), ("V", t, m, 1)], frate=6))
    n_pv = len(items)
    for t in range(4):
        for m in range(2):
            for i in range(4):
                fills.append(dict(txt=cvt(OB + 8 * t + 4 * m + i, ACC + 16 * t + 8 * m + 2 * i),
                                  gate=n_s + 2 * t + 1, after=n_s + 2 * t + 1, id=("O", 2 * t + m, i)))
            fills.append(dict(txt="ds_write_b128 %s, %s offset:%d" % (v(VOW), v(OB + 8 * t + 4 * m, 4),
                                                                    (2 * t + m) * 1024),
                              gate=n_s + 2 * t + 1, tag=("OW", t, m), id=("OW", 2 * t + m)))

    PO = KF
    A2 = AF
    ACC2 = 64
    STG = 96
    NA2 = o.na2
    last_use = [n_s + b for b in range(8)]
    an = 0
    for c in range(9):
        sg = 10 + c
        slot = sg % NSLOT
        cbase = len(items)
        for j in range(16):
            ab = an % NA2; an += 1
            sgate = -1 if c == 0 else (cbase - 16 + o.bpos2)
            g = max(sgate, last_use[ab])
            va = VWO + (j >> 3) + (2 if slot >= 2 else 0)
            off = (slot & 1) * 32768 + (j & 7) * 2048
            if c == 0 and j >= 8:
                rd = dict(txt="ds_read_b128 %s, %s offset:%d" % (v(PO + 4 * (j - 8), 4), v(VOR), (j - 8) * 1024),
                          tag=("PO", j - 8), gate=cbase + o.opos, fneeds=[("OW", 7)])
                if j == 8:
                    rd["pre"] = barrier("BO", True)
                reads.append(rd)
            for i in range(2):
                rd = dict(txt="ds_read_b64_tr_b16 %s, %s offset:%d" % (
                    v(A2 + 4 * ab + 2 * i, 2), v(va), off + i * 512), tag=("A2", c, j, i), gate=g)
                if j == 0 and i == 0 and c > 0:
                    rd["pre"] = barrier("B%d" % sg, dr)
                reads.append(rd)
            last_use[ab] = cbase + j
            acc = ACC2 + 16 * (c & 1)
            bsrc = OB + 4 * j if j < 8 else PO + 4 * (j - 8)
            needs = [("A2", c, j, 0), ("A2", c, j, 1)]
            it = dict(mfma="v_mfma_f32_32x32x16_bf16 %s, %s, %s, %s" % (
                v(acc, 16), v(A2 + 4 * ab, 4), v(bsrc, 4), "0" if j == 0 else v(acc, 16)), needs=needs,
                frate=o.frate2, rate=o.rate2)
            if c == 0:
                it["frate"] = 5
                if j >= 8:
                    needs.append(("PO", j - 8))
                else:
                    it["fneeds"] = [("O", j, 3)]
                if j == 0:
                    it["fneeds"].append(("O", 1, 3))
            if c == 1 and j == 0:
                it["fneeds"] = [("O", 3, 3)]
            items.append(it)

    for c in range(9):
        last = n_pv + 16 * c + 15
        g = last + 2 if c < 8 else last
        acc = ACC2 + 16 * (c & 1)
        fills.append(dict(fn=lambda pp, c=c: setattr(pp, "ninstr", pp.ninstr + stage_off(pp.a, c, 4096, S_T1, o.rot)),
                          gate=g))
        for m in range(2):
            sg = STG + 8 * (c & 1) + 4 * m
            for i in range(4):
                fills.append(dict(txt=cvt(sg + i, acc + 8 * m + 2 * i), gate=g, after=last, force=(c == 8)))
            fills.append(dict(txt="buffer_store_dwordx4 %s, %s, %s, %s offen offset:%d%s" % (
                v(sg, 4), v(VP), s(R_P, 4), s(S_T1), m * 1024, o.st_flags), gate=g))
    p.run(items, reads, fills, o.rate, 2)
    st.stamp()
    if o.stamps:
        a("s_waitcnt vmcnt(0)")
        st.stamp()
    st.flush()


def reduce_kernel(a, o):
    name = o.red_name
    a.raw(".globl %s\n.p2align 8\n.type %s,@function\n%s:" % (name, name, name))
    o.end = "L_red_end"
    st = Stamper(a, o.stamps)
    a("s_cmp_ge_u32 s2, 288")
    a("s_cbranch_scc1 %s" % o.end)
    a("s_load_dwordx2 %s, s[0:1], 80" % s(POUT, 2))
    a("s_load_dwordx2 %s, s[0:1], 96" % s(PWS, 2))
    st.stamp()
    if o.stamps:
        a("s_memtime %s" % s(S_CY0, 2))
    a("v_lshrrev_b32 v1, 6, v0")
    a("v_and_b32 v0, 63, v0")
    a("v_readfirstlane_b32 %s, v1" % s(S_WAVE))
    a("s_lshl_b32 s4, s2, 2")
    a("s_add_u32 s4, s4, %s" % s(S_WAVE))
    a("s_and_b32 s5, s4, 1")
    a("s_lshr_b32 s4, s4, 1")
    a("s_mul_i32 s6, s4, 3641")
    a("s_lshr_b32 s6, s6, 16")
    a("s_mul_i32 s7, s6, 18")
    a("s_sub_u32 s7, s4, s7")
    a("s_and_b32 s36, s6, 1")
    a("s_lshr_b32 s6, s6, 1")
    a("s_mul_i32 s37, s6, %d" % (16 * PART))
    a("s_mul_i32 s38, s36, 18")
    a("s_add_u32 s38, s38, s7")
    a("s_lshl_b32 s38, s38, 1")
    a("s_add_u32 s38, s38, s5")
    a("s_lshl_b32 s38, s38, 10")
    a("v_lshl_add_u32 v1, v0, 4, s38")
    a("s_waitcnt lgkmcnt(0)")
    srd(a, R_P, PWS, 37, 16 * PART)
    srd(a, R_X, POUT, None, 512 * 2304)
    a("s_mov_b32 s38, 0")
    for pidx in range(16):
        a("buffer_load_dwordx4 %s, v1, %s, s38 offen%s" % (v(16 + 4 * pidx, 4), s(R_P, 4), o.ld_flags))
        if pidx < 15:
            a("s_add_u32 s38, s38, %d" % PART)
    a("s_and_b32 s37, s6, 7")
    a("s_lshl_b32 s37, s37, 1")
    a("s_add_u32 s37, s37, s36")
    a("s_mul_i32 s37, s37, %d" % (32 * 2304))
    a("s_lshr_b32 s38, s6, 3")
    a("s_mul_i32 s38, s38, 1152")
    a("s_add_u32 s37, s37, s38")
    a("s_lshl_b32 s38, s7, 6")
    a("s_add_u32 s37, s37, s38")
    a("s_lshl_b32 s38, s5, 5")
    a("s_add_u32 s37, s37, s38")
    a("v_and_b32 v2, 31, v0")
    a("v_mul_u32_u24 v2, 2304, v2")
    a("v_lshrrev_b32 v3, 5, v0")
    a("v_lshl_add_u32 v2, v3, 4, v2")
    a("v_add_u32 v2, s37, v2")
    for pidx in range(16):
        a("s_waitcnt vmcnt(%d)" % (15 - pidx))
        for d in range(4):
            r = 16 + 4 * pidx + d
            if pidx == 0:
                a("v_lshlrev_b32 %s, 16, %s" % (v(8 + 2 * d), v(r)))
                a("v_and_b32 %s, 0xffff0000, %s" % (v(9 + 2 * d), v(r)))
            else:
                a("v_lshlrev_b32 v4, 16, %s" % v(r))
                a("v_and_b32 v5, 0xffff0000, %s" % v(r))
                a("v_add_f32 %s, %s, v4" % (v(8 + 2 * d), v(8 + 2 * d)))
                a("v_add_f32 %s, %s, v5" % (v(9 + 2 * d), v(9 + 2 * d)))
    for d in range(4):
        a("v_cvt_pk_bf16_f32 %s, %s, %s" % (v(4 + d), v(8 + 2 * d), v(9 + 2 * d)))
    a("buffer_store_dwordx4 v[4:7], v2, %s, 0 offen" % s(R_X, 4))
    if o.stamps:
        a("s_waitcnt vmcnt(0)")
        st.stamp()
        st.flush(koff=1 << 20)
    a.label(o.end)
    a("s_endpgm")


def gen(o):
    a = Asm()
    o.main_name = "main_kernel"
    o.red_name = "reduce_kernel"
    hdr = HEADER
    hdr += "; @launch kernel=%s grid=(256,1,1) block=(448,1,1) lds=%d\n" % (o.main_name, LDS_TOTAL)
    if not o.noreduce:
        hdr += "; @launch kernel=%s grid=(288,1,1) block=(256,1,1) lds=0\n" % (o.red_name)
    a.raw(hdr + '.amdgcn_target "amdgcn-amd-amdhsa--gfx950"\n.text')
    main_kernel(a, o)
    reduce_kernel(a, o)
    a.raw('.section .rodata,"a"')
    a.raw(kernel_desc(o.main_name, 256, 102))
    a.raw(kernel_desc(o.red_name, 80, 102))
    return a.text()


def parse(argv):
    ap = argparse.ArgumentParser()
    ap.add_argument("-o", default="k2.s")
    ap.add_argument("--stamps", type=int, default=0)
    ap.add_argument("--cstamps", default="B1,B4,B8,B9,B9x,BO,B12,B15,B18")
    ap.add_argument("--rot", type=int, default=0)
    ap.add_argument("--nt", type=int, default=1)
    ap.add_argument("--nt_x", type=int, default=0)
    ap.add_argument("--mode", default="drain")
    ap.add_argument("--maxout", type=int, default=12)
    ap.add_argument("--rate", type=int, default=3)
    ap.add_argument("--frate2", type=int, default=2)
    ap.add_argument("--rate2", type=int, default=3)
    ap.add_argument("--bpos", type=int, default=1)
    ap.add_argument("--bpos2", type=int, default=12)
    ap.add_argument("--opos", type=int, default=3)
    ap.add_argument("--na2", type=int, default=8)
    ap.add_argument("--nb", type=int, default=3)
    ap.add_argument("--prio", type=int, default=0)
    ap.add_argument("--noload", type=int, default=0)
    ap.add_argument("--noreduce", type=int, default=0)
    ap.add_argument("--skip", default="")
    ap.add_argument("--st_flags", default="")
    ap.add_argument("--ld_flags", default="")
    ap.add_argument("--pf_code", type=int, default=3)
    ap.add_argument("--pf_win", type=int, default=4)
    ap.add_argument("--wo_order", default="chunk")
    ap.add_argument("--pf_list", default="q0,x0,q1,q2,x1,q3,q4,x2,k0,k1,v0,v1,o0,o1,o2,o3,o4")
    return ap.parse_args(argv)


if __name__ == "__main__":
    o = parse(sys.argv[1:])
    open(o.o, "w").write(gen(o))
    print("wrote", o.o)
```

```python
import sys, argparse, math, struct
from asmlib import Asm, v, s, kernel_desc, HEADER

NAME = "concat_heads__gqa_block_cached__gqa_block_cached__near_ridge"
STAMP_OFF = 200 << 20

W0 = 0
X0 = 131072
LDS_TOTAL = 163840
PART = 73728
NSLOT = 4
ST_KV = 9
NST = 19

S_WAVE, S_BR, S_KVH, S_BP, S_T = 3, 4, 5, 6, 7
R_X, R_WQ, R_WO, R_K, R_V, R_P, R_ST = 8, 12, 16, 20, 24, 28, 32
KA = 36
PX, PK, PV, PWQ, PWO = KA, KA + 2, KA + 4, KA + 6, KA + 8
POUT, PDBG, PWS = KA + 20, KA + 22, KA + 24
S_T1, S_T2, S_T3, S_T4 = 88, 89, 90, 91
S_BL, S_HH, S_C, S_LW = 92, 93, 94, 95
S_ROT = 62
S_STAMP = 64
NSTAMP = 12
S_CY0, S_CY1 = 96, 98


def srd(a, r, base, off_s, nbytes):
    if off_s is None:
        a("s_mov_b32 %s, %s" % (s(r), s(base)))
        a("s_mov_b32 %s, %s" % (s(r + 1), s(base + 1)))
    else:
        a("s_add_u32 %s, %s, %s" % (s(r), s(base), s(off_s)))
        a("s_addc_u32 %s, %s, 0" % (s(r + 1), s(base + 1)))
    a("s_mov_b32 %s, 0x%x" % (s(r + 2), nbytes))
    a("s_mov_b32 %s, 0x00020000" % s(r + 3))


class Stamper:
    def __init__(self, a, on, n=0):
        self.a, self.on, self.n = a, on, n

    def stamp(self):
        if self.on:
            assert self.n < NSTAMP
            self.a("s_memrealtime %s" % s(S_STAMP + 2 * self.n, 2))
            self.n += 1

    def flush(self, koff=0):
        a = self.a
        if not self.on:
            return
        a("s_memtime %s" % s(S_CY1, 2))
        a("s_waitcnt lgkmcnt(0)")
        a("s_sub_u32 %s, %s, %s" % (s(S_CY1), s(S_CY1), s(S_CY0)))
        a("s_mov_b32 %s, 0" % s(S_CY1 + 1))
        a("s_lshl_b32 %s, s2, 3" % s(S_T1))
        a("s_add_u32 %s, %s, %s" % (s(S_T1), s(S_T1), s(S_WAVE)))
        a("s_lshl_b32 %s, %s, 7" % (s(S_T1), s(S_T1)))
        a("s_add_u32 %s, %s, 0x%x" % (s(S_T1), s(S_T1), STAMP_OFF + koff))
        srd(a, R_ST, PWS, S_T1, 128)
        a("v_mov_b32 v1, 0")
        for i in range(16):
            src = S_STAMP + 2 * i if i < self.n else (S_CY1 if i == 15 else None)
            a("v_mov_b32 v2, %s" % (s(src) if src else "0"))
            a("v_mov_b32 v3, %s" % (s(src + 1) if src else "0"))
            a("buffer_store_dwordx2 v[2:3], v1, %s, 0 offen offset:%d" % (s(R_ST, 4), 8 * i))
            a("s_nop 1")


class Pipe:
    def __init__(self, a, maxout=14):
        self.a = a
        self.q = []
        self.maxout = maxout
        self.ninstr = 0
        self.skip = []
        self.fill = []

    def emit(self, txt):
        if self.skip:
            txt = "\n".join(x for x in txt.split("\n") if not any(k in x for k in self.skip))
        self.a(txt)
        self.ninstr += len([x for x in txt.split("\n") if x.strip()])

    def nop(self, n):
        while n > 0:
            k = min(n, 16)
            self.emit("s_nop %d" % (k - 1))
            self.ninstr += k - 1
            n -= k

    def lds(self, txt, tag):
        self.emit(txt)
        self.q.append(tag)

    def need(self, tags):
        idx = -1
        for i, t in enumerate(self.q):
            if t in tags:
                idx = i
        if idx >= 0:
            n = len(self.q) - idx - 1
            assert n <= 15
            self.emit("s_waitcnt lgkmcnt(%d)" % n)
            self.q = self.q[idx + 1:]

    def drain(self):
        self.emit("s_waitcnt lgkmcnt(0)")
        self.q = []

    def do_fill(self, items, f):
        if f.get("after") is not None:
            d = self.ninstr - items[f["after"]]["at"]
            if d < 12:
                self.nop(12 - d)
        if f.get("tag"):
            self.lds(f["txt"], f["tag"])
        elif f.get("fn"):
            f["fn"](self)
        else:
            self.emit(f["txt"])
        if f.get("id"):
            self.done.add(f["id"])

    def run(self, items, reads, fills, rate, frate):
        ri = 0
        fi = 0
        issued = set()
        self.done = set()

        def issue_one():
            nonlocal ri
            r = reads[ri]
            if r.get("pre"):
                r["pre"](self)
            self.lds(r["txt"], r["tag"])
            issued.add(r["tag"])
            ri += 1

        def fill_until(fid):
            nonlocal fi
            while fid not in self.done:
                self.do_fill(items, fills[fi])
                fi += 1

        while ri < len(reads) and reads[ri]["gate"] < 0 and len(self.q) < self.maxout:
            issue_one()
        for i, it in enumerate(items):
            for fid in it.get("fneeds", []):
                if fid not in self.done:
                    fill_until(fid)
                    self.nop(2)
            for t in it["needs"]:
                while t not in issued:
                    assert reads[ri]["gate"] < i, (i, reads[ri])
                    for fid in reads[ri].get("fneeds", []):
                        fill_until(fid)
                    issue_one()
            self.need(set(it["needs"]))
            self.emit(it["mfma"])
            it["at"] = self.ninstr
            n = 0
            while ri < len(reads) and reads[ri]["gate"] <= i and n < it.get("rate", rate) and (
                    len(self.q) < self.maxout or reads[ri].get("pre")) and all(
                        fid in self.done for fid in reads[ri].get("fneeds", [])):
                issue_one()
                n += 1
            for t in it.get("issue", []):
                while t not in issued:
                    assert reads[ri]["gate"] <= i
                    if len(self.q) >= 15:
                        self.need({self.q[0]})
                    issue_one()
            n = 0
            while fi < len(fills) and fills[fi]["gate"] <= i and n < it.get("frate", frate):
                if fills[fi].get("after") is not None and not fills[fi].get("force") and (
                        self.ninstr - items[fills[fi]["after"]]["at"] < 12):
                    break
                self.do_fill(items, fills[fi])
                fi += 1
                n += 1
            for p in it.get("post", []):
                p(self)
        while fi < len(fills):
            self.do_fill(items, fills[fi])
            fi += 1
        assert ri == len(reads)


def barrier_plan(o):
    ahead = NSLOT - 1 if o.mode == "drain" else NSLOT - 2
    first = list(range(ahead + (0 if o.mode == "drain" else 0) + 1)) if o.mode == "drain" else list(range(NSLOT - 1))
    pro = list(range(NSLOT))
    nxt = NSLOT
    plan = []

    def freed(upto):
        nonlocal nxt
        out = []
        while nxt < NST and nxt - NSLOT <= upto:
            out.append(nxt)
            nxt += 1
        return out
    lag = 1 if o.mode == "drain" else 2
    for sg in range(0, ST_KV + 1):
        plan.append(("B%d" % sg, sg, freed(sg - lag)))
    plan.append(("B9x", ST_KV + 1, freed(ST_KV)))
    plan.append(("BO", None, []))
    for sg in range(ST_KV + 2, NST):
        plan.append(("B%d" % sg, sg, freed(sg - lag)))
    return pro, plan


def stage_off(a, sidx, mult, dst, rot):
    if not rot:
        a("s_mov_b32 %s, %d" % (s(dst), sidx * mult))
        return 1
    a("s_add_u32 %s, %s, %d" % (s(dst), s(S_ROT), sidx))
    a("s_cmp_ge_u32 %s, 9" % s(dst))
    a("s_cselect_b32 %s, 9, 0" % s(S_T))
    a("s_sub_u32 %s, %s, %s" % (s(dst), s(dst), s(S_T)))
    a("s_mul_i32 %s, %s, %d" % (s(dst), s(dst), mult))
    return 5


def main_kernel(a, o):
    st = Stamper(a, o.stamps)
    name = o.main_name
    a.raw(".globl %s\n.p2align 8\n.type %s,@function\n%s:" % (name, name, name))
    o.end = "L_main_end"
    a("s_cmp_ge_u32 s2, 256")
    a("s_cbranch_scc1 %s" % o.end)
    a("s_load_dwordx16 %s, s[0:1], 0" % s(KA, 16))
    a("s_load_dwordx4 %s, s[0:1], 64" % s(KA + 16, 4))
    a("s_load_dwordx4 %s, s[0:1], 80" % s(KA + 20, 4))
    a("s_load_dwordx2 %s, s[0:1], 96" % s(KA + 24, 2))
    st.stamp()
    if o.stamps:
        a("s_memtime %s" % s(S_CY0, 2))
    a("v_lshrrev_b32 v1, 6, v0")
    a("v_and_b32 v0, 63, v0")
    a("v_readfirstlane_b32 %s, v1" % s(S_WAVE))
    a("s_lshr_b32 %s, s2, 2" % s(S_BR))
    a("s_and_b32 %s, %s, 1" % (s(S_BR), s(S_BR)))
    a("s_and_b32 %s, s2, 3" % s(S_KVH))
    a("s_lshl_b32 %s, %s, 2" % (s(S_KVH), s(S_KVH)))
    a("s_lshr_b32 %s, s2, 6" % s(S_T))
    a("s_add_u32 %s, %s, %s" % (s(S_KVH), s(S_KVH), s(S_T)))
    a("s_lshr_b32 %s, s2, 3" % s(S_BP))
    a("s_and_b32 %s, %s, 7" % (s(S_BP), s(S_BP)))
    if o.rot:
        a("s_mul_i32 %s, %s, %d" % (s(S_ROT), s(S_BP), o.rot))
        a("s_mul_i32 %s, %s, 57" % (s(S_T), s(S_ROT)))
        a("s_lshr_b32 %s, %s, 9" % (s(S_T), s(S_T)))
        a("s_mul_i32 %s, %s, 9" % (s(S_T), s(S_T)))
        a("s_sub_u32 %s, %s, %s" % (s(S_ROT), s(S_ROT), s(S_T)))
    OX, OWQ, OWO, OKV = 63, 100, 101, R_ST
    a("s_mul_i32 %s, %s, %d" % (s(OX), s(S_BP), 64 * 1152))
    a("s_lshl_b32 %s, %s, 9" % (s(OWQ), s(S_KVH)))
    a("s_mul_i32 %s, %s, %d" % (s(OWO), s(S_KVH), 256 * 1152))
    a("s_lshl_b32 %s, %s, 5" % (s(S_T), s(S_BP)))
    a("s_add_u32 %s, %s, %s" % (s(S_T), s(S_T), s(S_KVH)))
    a("s_lshl_b32 %s, %s, 13" % (s(OKV), s(S_T)))
    a("s_cmp_ge_u32 %s, 3" % s(S_WAVE))
    a("s_cbranch_scc1 L_compute")
    a("s_cmp_eq_u32 %s, 0" % s(S_WAVE))
    a("s_cbranch_scc0 L_loader")

    def ptrs():
        a("s_waitcnt lgkmcnt(0)")
        a("s_cmp_eq_u32 %s, 0" % s(S_BR))
        for i in range(5):
            a("s_cselect_b64 %s, %s, %s" % (s(KA + 2 * i, 2), s(KA + 2 * i, 2), s(KA + 10 + 2 * i, 2)))
        srd(a, R_WQ, PWQ, OWQ, 575 * 8192 + 512)
        srd(a, R_X, PX, OX, 64 * 1152)
        srd(a, R_K, PK, OKV, 131072 + 8192)
        srd(a, R_V, PV, OKV, 131072 + 8192)
        srd(a, R_WO, PWO, OWO, 256 * 1152)

    service(a, o, Stamper(a, o.stamps, 1 if o.stamps else 0), ptrs)
    a("s_endpgm")
    a.label("L_loader")
    loader(a, o, Stamper(a, o.stamps, 1 if o.stamps else 0), ptrs)
    a("s_endpgm")
    a.label("L_compute")
    compute(a, o, Stamper(a, o.stamps, 1 if o.stamps else 0))
    a.label(o.end)
    a("s_endpgm")
    a.label("L_code_end")


def service(a, o, st, ptrs):
    VQ, VX, VKV, VO, VC = 4, 5, 6, 7, 8
    nt = " nt" if o.nt else ""
    a("v_lshrrev_b32 v1, 5, v0")
    a("v_lshlrev_b32 v1, 6, v1")
    a("v_bfe_u32 v2, v0, 2, 3")
    a("v_add_u32 v1, v1, v2")
    a("s_lshl_b32 %s, %s, 3" % (s(S_T), s(S_BP)))
    a("v_add_u32 v1, %s, v1" % s(S_T))
    a("v_lshlrev_b32 v1, 13, v1")
    a("v_and_b32 v2, 3, v0")
    a("v_lshl_add_u32 %s, v2, 7, v1" % v(VQ))
    a("s_lshr_b32 %s, s2, 6" % s(S_T))
    a("s_lshl_b32 %s, %s, 4" % (s(S_T), s(S_T)))
    a("v_and_b32 v1, 15, v0")
    a("v_add_u32 v1, %s, v1" % s(S_T))
    a("v_mul_u32_u24 v1, 1152, v1")
    a("v_lshrrev_b32 v2, 4, v0")
    a("v_lshl_add_u32 %s, v2, 7, v1" % v(VX))
    a("v_lshlrev_b32 %s, 7, v0" % v(VKV))
    if o.wo_order == "chunk":
        a("s_lshl_b32 %s, %s, 5" % (s(S_T), s(S_BP)))
        a("v_and_b32 v1, 31, v0")
        a("v_add_u32 v1, %s, v1" % s(S_T))
        a("v_mul_u32_u24 v1, 1152, v1")
        a("v_lshrrev_b32 v2, 5, v0")
        a("v_lshl_add_u32 %s, v2, 7, v1" % v(VO))
        wo_step = 256
    else:
        a("s_mul_i32 %s, %s, %d" % (s(S_T), s(S_BP), 32 * 1152))
        a("v_add_u32 %s, %s, %s" % (v(VO), s(S_T), v(VKV)))
        wo_step = 8192
    ptrs()
    st.stamp()
    lst = []
    if o.pf_code:
        a("s_getpc_b64 %s" % s(R_P, 2))
        a.label("L_pc")
        a("s_mov_b32 %s, L_code_end-L_pc" % s(R_P + 2))
        a("s_mov_b32 %s, 0x00020000" % s(R_P + 3))
        for i in range(o.pf_code):
            lst.append((VKV, R_P, i * 8192, ""))
    Q = [(VQ, R_WQ, i * 1048576, nt) for i in range(5)]
    X = [(VX, R_X, i * 512, " nt" if o.nt_x else "") for i in range(3)]
    K = [(VKV, R_K, i * 131072, nt) for i in range(2)]
    V = [(VKV, R_V, i * 131072, nt) for i in range(2)]
    O = [(VO, R_WO, i * wo_step, nt) for i in range(5)]
    d = dict(q=Q, x=X, k=K, v=V, o=O)
    for tok in o.pf_list.split(","):
        if tok:
            lst.append(d[tok[0]][int(tok[1:])])
    for i, (vo, r, off, fl) in enumerate(lst):
        if i >= o.pf_win:
            a("s_waitcnt vmcnt(%d)" % (o.pf_win - 1))
        a("s_mov_b32 %s, %d" % (s(S_T), off))
        a("buffer_load_dword %s, %s, %s, %s offen%s" % (v(16 + i), v(vo), s(r, 4), s(S_T), fl))
    st.stamp()
    if o.stamps:
        a("s_waitcnt vmcnt(0)")
        st.stamp()
        st.flush()


def loader(a, o, st, ptrs):
    NL = 2
    LW = S_LW
    VWQ, VX, VWO, VK0, VK1, VV = 10, 11, 12, 13, 14, 15
    a("s_sub_u32 %s, %s, 1" % (s(LW), s(S_WAVE)))
    a("v_lshrrev_b32 v1, 5, v0")
    a("s_lshl_b32 %s, %s, 1" % (s(S_T), s(LW)))
    a("v_add_u32 v2, %s, v1" % s(S_T))
    a("v_lshlrev_b32 v2, 2, v2")
    a("v_and_b32 v3, 31, v0")
    a("v_xor_b32 v2, v2, v3")
    a("v_lshlrev_b32 v2, 4, v2")
    a("v_lshl_add_u32 v2, v1, 13, v2")
    a("s_lshl_b32 %s, %s, 14" % (s(S_T), s(LW)))
    a("v_add_u32 %s, %s, v2" % (v(VWQ), s(S_T)))
    a("v_lshrrev_b32 v1, 3, v0")
    a("s_lshl_b32 %s, %s, 3" % (s(S_T), s(LW)))
    a("v_add_u32 v1, %s, v1" % s(S_T))
    a("v_mul_u32_u24 v1, 1152, v1")
    a("v_lshrrev_b32 v2, 4, v0")
    a("s_lshl_b32 %s, %s, 2" % (s(S_T), s(LW)))
    a("v_add_u32 v2, %s, v2" % s(S_T))
    a("v_and_b32 v3, 7, v0")
    a("v_xor_b32 v2, v2, v3")
    a("v_lshl_add_u32 %s, v2, 4, v1" % v(VX))
    a("v_lshrrev_b32 v2, 2, v0")
    a("v_and_b32 v2, 4, v2")
    a("v_xor_b32 v2, v2, v3")
    a("v_lshl_add_u32 %s, v2, 4, v1" % v(VWO))
    a("v_lshrrev_b32 v1, 4, v0")
    a("v_and_b32 v3, 15, v0")
    a("v_xor_b32 v2, v1, v3")
    a("v_lshlrev_b32 v2, 4, v2")
    a("v_lshl_add_u32 v2, v1, 8, v2")
    a("s_lshl_b32 %s, %s, 6" % (s(S_T), s(LW)))
    a("v_xor_b32 v2, %s, v2" % s(S_T))
    a("s_lshl_b32 %s, %s, 10" % (s(S_T4), s(LW)))
    a("v_add_u32 %s, %s, v2" % (v(VK0), s(S_T4)))
    a("v_xor_b32 %s, 128, %s" % (v(VK1), v(VK0)))
    a("v_lshlrev_b32 v2, 2, v1")
    a("v_xor_b32 v2, v2, v3")
    a("v_lshlrev_b32 v2, 4, v2")
    a("v_lshl_add_u32 v2, v1, 8, v2")
    a("v_add_u32 %s, %s, v2" % (v(VV), s(S_T4)))
    ptrs()
    st.stamp()
    nt = " nt" if o.nt else ""
    ntx = " nt" if o.nt_x else ""
    cnt = {}

    def dma(vo, r, soff, lds, fl, sprev):
        a("s_add_u32 m0, %s, %d" % (s(S_T4), lds))
        if sprev is None:
            a("s_nop 0")
        else:
            a("s_add_u32 %s, %s, %d" % (s(soff), s(soff), sprev))
        a("buffer_load_dwordx4 %s, %s, %s offen%s lds" % (v(vo), s(r, 4), s(soff), fl))

    def issue(sg):
        slot = sg % NSLOT
        n = 0
        if o.noload:
            cnt[sg] = 0
            return
        if sg < 9:
            stage_off(a, sg, 128, S_T2, o.rot)
            a("s_lshl_b32 %s, %s, 12" % (s(S_T1), s(S_T2)))
            for i in range(4):
                dma(VX, R_X, S_T2, X0 + slot * 8192 + i * 2048, ntx, 18432 if i else None)
            for i in range(16):
                dma(VWQ, R_WQ, S_T1, W0 + slot * 32768 + i * 2048, nt, 32768 if i else None)
            n = 20
        elif sg == ST_KV:
            for t, r in enumerate((R_K, R_V)):
                a("s_mov_b32 %s, 0" % s(S_T1))
                for b in range(2):
                    for ii in range(4):
                        vo = (VK0 + (ii & 1)) if t == 0 else VV
                        step = None if (b == 0 and ii == 0) else (2048 if ii else 131072 - 3 * 2048)
                        dma(vo, r, S_T1, W0 + slot * 32768 + t * 16384 + b * 8192 + ii * 2048, nt, step)
            n = 16
        else:
            stage_off(a, sg - 10, 128, S_T1, o.rot)
            for i in range(16):
                dma(VWO, R_WO, S_T1, W0 + slot * 32768 + i * 2048, nt, 18432 if i else None)
            n = 16
        cnt[sg] = n

    pro, plan = barrier_plan(o)
    seq = []

    def wait_for(sg):
        k = seq.index(sg)
        n = sum(cnt[x] for x in seq[k + 1:])
        assert n <= 63
        a("s_waitcnt vmcnt(%d)" % n)

    for sg in pro:
        if sum(cnt[x] for x in seq) + 20 > 63:
            wait_for(seq[0])
        issue(sg)
        seq.append(sg)
    st.stamp()
    landed = set()
    for nm, need, nxt in plan:
        if need is not None:
            wait_for(need)
        if nm in ("B0", "B1", "B4", "B8", "B9", "B9x", "B12", "B15", "B18"):
            st.stamp()
        a("s_barrier")
        for sg in nxt:
            out = sum(cnt[x] for x in seq[seq.index(need) + 1:]) if need is not None else 0
            if out + 20 > 63:
                wait_for(seq[seq.index(need) + 1])
            issue(sg)
            seq.append(sg)
    st.flush()


def compute(a, o, st):
    BL, HH = S_BL, S_HH
    CW = S_LW
    a("s_sub_u32 %s, %s, 3" % (s(CW), s(S_WAVE)))
    a("s_and_b32 %s, %s, 1" % (s(BL), s(CW)))
    a("s_lshr_b32 %s, %s, 1" % (s(HH), s(CW)))

    VA = 8
    VX = 16
    VK = 20
    VV = 21
    VOW, VOR = 25, 26
    VWO = 27
    VP = 31
    T0, T1, T2, T3 = 32, 33, 34, 35
    VH, VR, VTR = 36, 37, 38
    BF = 48
    ACC = 64
    AF = 128
    PF = 160
    QB = 168
    SA = 200
    KF = 216
    a("v_lshrrev_b32 %s, 5, v0" % v(VH))
    a("v_bfe_u32 %s, v0, 2, 2" % v(VR))
    a("v_and_b32 %s, 1, v0" % v(T0))
    a("v_lshlrev_b32 %s, 4, %s" % (v(T0), v(T0)))
    a("v_and_b32 %s, 2, v0" % v(T1))
    a("v_lshl_add_u32 %s, %s, 2, %s" % (v(T0), v(T1), v(T0)))
    a("v_and_b32 %s, 16, v0" % v(T1))
    a("v_lshl_add_u32 %s, %s, 1, %s" % (v(VTR), v(T1), v(T0)))
    a("v_lshl_add_u32 %s, %s, 3, %s" % (v(T2), v(VH), v(VR)))
    a("v_lshl_add_u32 %s, %s, 9, %s" % (v(T0), v(T2), v(VTR)))
    a("s_lshl_b32 %s, %s, 8" % (s(S_T), s(HH)))
    a("v_add_u32 %s, %s, %s" % (v(T0), s(S_T), v(T0)))
    for t in range(4):
        a("v_xor_b32 %s, %d, %s" % (v(T1), t, v(VR)))
        a("v_lshl_add_u32 %s, %s, 6, %s" % (v(VA + t), v(T1), v(T0)))
        a("v_add_u32 %s, 0x10000, %s" % (v(VA + 4 + t), v(VA + t)))
    KVB = W0 + (ST_KV % NSLOT) * 32768
    a("v_lshl_add_u32 %s, %s, 8, %s" % (v(T0), v(T2), v(VTR)))
    a("s_lshl_b32 %s, %s, 13" % (s(S_T), s(BL)))
    a("s_add_u32 %s, %s, %d" % (s(S_T), s(S_T), KVB + 16384))
    a("v_add_u32 %s, %s, %s" % (v(T0), s(S_T), v(T0)))
    for t in range(4):
        a("v_xor_b32 %s, %d, %s" % (v(T1), t, v(VR)))
        a("v_lshl_add_u32 %s, %s, 6, %s" % (v(VV + t), v(T1), v(T0)))
    a("v_lshl_add_u32 %s, %s, 7, %s" % (v(T0), v(T2), v(VTR)))
    a("v_lshrrev_b32 %s, 1, %s" % (v(T1), v(VR)))
    a("v_xor_b32 %s, %s, %s" % (v(T1), s(HH), v(T1)))
    a("v_lshl_add_u32 %s, %s, 6, %s" % (v(T0), v(T1), v(T0)))
    a("s_lshl_b32 %s, %s, 14" % (s(S_T), s(HH)))
    a("v_add_u32 %s, %s, %s" % (v(VWO), s(S_T), v(T0)))
    a("v_xor_b32 %s, 0x4000, %s" % (v(VWO + 1), v(VWO)))
    a("v_add_u32 %s, 0x10000, %s" % (v(VWO + 2), v(VWO)))
    a("v_add_u32 %s, 0x10000, %s" % (v(VWO + 3), v(VWO + 1)))
    a("v_and_b32 %s, 31, v0" % v(T0))
    a("v_bfe_u32 %s, v0, 1, 3" % v(T1))
    a("v_xor_b32 %s, %s, %s" % (v(T1), v(T1), v(VH)))
    a("v_lshlrev_b32 %s, 4, %s" % (v(T1), v(T1)))
    a("v_lshl_add_u32 %s, %s, 7, %s" % (v(T1), v(T0), v(T1)))
    a("s_lshl_b32 %s, %s, 12" % (s(S_T), s(BL)))
    a("s_add_u32 %s, %s, %d" % (s(S_T), s(S_T), X0))
    a("v_add_u32 %s, %s, %s" % (v(VX), s(S_T), v(T1)))
    for j in range(1, 4):
        a("v_xor_b32 %s, %d, %s" % (v(VX + j), 32 * j, v(VX)))
    a("v_and_b32 %s, 0x13, %s" % (v(T1), v(T0)))
    a("v_and_b32 %s, 4, %s" % (v(T2), v(T0)))
    a("v_lshl_add_u32 %s, %s, 1, %s" % (v(T1), v(T2), v(T1)))
    a("v_and_b32 %s, 8, %s" % (v(T2), v(T0)))
    a("v_lshrrev_b32 %s, 1, %s" % (v(T2), v(T2)))
    a("v_add_u32 %s, %s, %s" % (v(T1), v(T1), v(T2)))
    a("v_and_b32 %s, 15, %s" % (v(T2), v(T1)))
    a("v_xor_b32 %s, %s, %s" % (v(T2), v(T2), v(VH)))
    a("v_lshlrev_b32 %s, 4, %s" % (v(T2), v(T2)))
    a("v_lshl_add_u32 %s, %s, 8, %s" % (v(T1), v(T1), v(T2)))
    a("s_lshl_b32 %s, %s, 13" % (s(S_T), s(BL)))
    a("s_add_u32 %s, %s, %d" % (s(S_T), s(S_T), KVB))
    a("v_add_u32 %s, %s, %s" % (v(VK), s(S_T), v(T1)))
    VK2 = 40
    for m in range(1, 8):
        a("v_xor_b32 %s, %d, %s" % (v(VK2 + m - 1), 32 * m, v(VK)))
    a("s_lshl_b32 %s, %s, 13" % (s(S_T), s(CW)))
    a("s_add_u32 %s, %s, %d" % (s(S_T), s(S_T), X0))
    a("v_lshl_add_u32 %s, v0, 4, %s" % (v(VOW), s(S_T)))
    a("v_xor_b32 %s, 0x4000, %s" % (v(VOR), v(VOW)))
    a("s_mul_i32 %s, %s, 18" % (s(S_T), s(BL)))
    a("s_add_u32 %s, %s, %s" % (s(S_T), s(S_T), s(HH)))
    a("s_lshl_b32 %s, %s, 11" % (s(S_T), s(S_T)))
    a("v_lshl_add_u32 %s, v0, 4, %s" % (v(VP), s(S_T)))
    cbits = struct.unpack("<I", struct.pack("<f", (128 ** -0.5) * math.log2(math.e)))[0]
    a("s_mov_b32 %s, 0x%x" % (s(S_C), cbits))
    a("s_lshl_b32 %s, %s, 3" % (s(S_T), s(S_BR)))
    a("s_add_u32 %s, %s, %s" % (s(S_T), s(S_T), s(S_BP)))
    a("s_lshl_b32 %s, %s, 4" % (s(S_T), s(S_T)))
    a("s_add_u32 %s, %s, %s" % (s(S_T), s(S_T), s(S_KVH)))
    a("s_mul_i32 %s, %s, %d" % (s(S_T), s(S_T), PART))
    a("s_waitcnt lgkmcnt(0)")
    srd(a, R_P, PWS, S_T, PART)
    if o.prio:
        a("s_setprio %d" % o.prio)

    p = Pipe(a, o.maxout)
    p.skip = [x for x in o.skip.split(",") if x]
    stamps = set(o.cstamps.split(","))

    def barrier(nm, drain):
        def f(pp):
            if nm in stamps and o.stamps:
                st.stamp()
                pp.drain()
            elif drain:
                pp.drain()
            pp.emit("s_barrier")
        return f
    dr = o.mode == "drain"

    def cvt(dst, src):
        return "v_cvt_pk_bf16_f32 %s, %s, %s" % (v(dst), v(src), v(src + 1))

    items, reads, fills = [], [], []
    NA, NB = 8, o.nb
    an = bn = 0
    last_use_a = [-1] * NA
    last_use_b = [-1] * NB
    for sg in range(9):
        slot = sg % NSLOT
        for j in range(4):
            base_i = len(items)
            sgate = -1 if sg == 0 else (sg * 16 - 4 + o.bpos)
            bb = bn % NB; bn += 1
            rd = dict(txt="ds_read_b128 %s, %s offset:%d" % (v(BF + 4 * bb, 4), v(VX + j), slot * 8192),
                      tag=("B", sg, j), gate=max(sgate, last_use_b[bb]))
            if j == 0:
                rd["pre"] = barrier("B%d" % sg, dr)
            reads.append(rd)
            last_use_b[bb] = base_i + 3
            for t in range(4):
                ab = an % NA; an += 1
                g = max(sgate, last_use_a[ab])
                va = VA + t + (4 if slot >= 2 else 0)
                off = (slot & 1) * 32768 + j * 8192
                for i in range(2):
                    reads.append(dict(txt="ds_read_b64_tr_b16 %s, %s offset:%d" % (
                        v(AF + 4 * ab + 2 * i, 2), v(va), off + i * 2048), tag=("A", sg, j, t, i), gate=g))
                last_use_a[ab] = base_i + t
                first = (sg == 0 and j == 0)
                items.append(dict(
                    mfma="v_mfma_f32_32x32x16_bf16 %s, %s, %s, %s" % (
                        v(ACC + 16 * t, 16), v(AF + 4 * ab, 4), v(BF + 4 * bb, 4),
                        "0" if first else v(ACC + 16 * t, 16)),
                    needs=[("B", sg, j), ("A", sg, j, t, 0), ("A", sg, j, t, 1)],
                    rate=3 if t == 3 else o.rate))
    n_p1 = len(items)
    kgate = 9 * 16 - 4 + o.bpos
    for m in range(8):
        rd = dict(txt="ds_read_b128 %s, %s" % (v(KF + 4 * m, 4), v(VK if m == 0 else VK2 + m - 1)),
                  tag=("K", m), gate=kgate)
        if m == 0:
            rd["pre"] = barrier("B9", dr)
        reads.append(rd)
    for t in range(4):
        for i in range(8):
            fills.append(dict(txt=cvt(QB + 8 * t + i, ACC + 16 * t + 2 * i), gate=n_p1 - 1, after=n_p1 - 4 + t,
                              force=True, id=("Q", t, i)))
    for m in range(8):
        items.append(dict(mfma="v_mfma_f32_32x32x16_bf16 %s, %s, %s, %s" % (
            v(SA, 16), v(KF + 4 * m, 4), v(QB + 4 * m, 4), "0" if m == 0 else v(SA, 16)),
            needs=[("K", m)], fneeds=[("Q", m // 2, 4 * (m & 1) + 3)], frate=6, rate=2))
    items[n_p1 - 1]["frate"] = 6
    for t in range(4):
        for m in range(2):
            for i in range(2):
                reads.append(dict(txt="ds_read_b64_tr_b16 %s, %s offset:%d" % (
                    v(AF + 8 * t + 4 * m + 2 * i, 2), v(VV + t), m * 4096 + i * 1024),
                    tag=("V", t, m, i), gate=n_p1 - 1))
    n_s = len(items)
    vtags = [("V", t, m, i) for t in range(4) for m in range(2) for i in range(2)]

    def softmax(pp):
        e = pp.emit
        barrier("B9x", True)(pp)
        d = pp.ninstr - items[n_s - 1]["at"]
        if d < 12:
            pp.nop(12 - d)
        S = SA
        e("v_max3_f32 %s, %s, %s, %s" % (v(T0), v(S), v(S + 1), v(S + 2)))
        e("v_max3_f32 %s, %s, %s, %s" % (v(T1), v(S + 3), v(S + 4), v(S + 5)))
        e("v_max3_f32 %s, %s, %s, %s" % (v(T2), v(S + 6), v(S + 7), v(S + 8)))
        e("v_max3_f32 %s, %s, %s, %s" % (v(T3), v(S + 9), v(S + 10), v(S + 11)))
        e("v_max3_f32 %s, %s, %s, %s" % (v(T0), v(T0), v(S + 12), v(S + 13)))
        e("v_max3_f32 %s, %s, %s, %s" % (v(T1), v(T1), v(S + 14), v(S + 15)))
        e("v_max3_f32 %s, %s, %s, %s" % (v(T0), v(T0), v(T2), v(T3)))
        e("v_max_f32 %s, %s, %s" % (v(T0), v(T0), v(T1)))
        e("v_mov_b32 %s, %s" % (v(T1), v(T0)))
        e("s_nop 1")
        e("v_permlane32_swap_b32 %s, %s" % (v(T0), v(T1)))
        e("s_nop 1")
        e("v_max_f32 %s, %s, %s" % (v(T0), v(T0), v(T1)))
        e("v_mul_f32 %s, %s, %s" % (v(T0), s(S_C), v(T0)))
        for i in range(16):
            e("v_fma_f32 %s, %s, %s, -%s" % (v(S + i), v(S + i), s(S_C), v(T0)))
            if i >= 1:
                e("v_exp_f32 %s, %s" % (v(S + i - 1), v(S + i - 1)))
        e("v_exp_f32 %s, %s" % (v(S + 15), v(S + 15)))
        e("v_add_f32 %s, %s, %s" % (v(T0), v(S), v(S + 1)))
        e("v_add_f32 %s, %s, %s" % (v(T1), v(S + 2), v(S + 3)))
        e("v_add_f32 %s, %s, %s" % (v(T2), v(S + 4), v(S + 5)))
        e("v_add_f32 %s, %s, %s" % (v(T3), v(S + 6), v(S + 7)))
        for i in range(8):
            e("v_add_f32 %s, %s, %s" % (v(T0 + (i & 3)), v(T0 + (i & 3)), v(S + 8 + i)))
        e("v_add_f32 %s, %s, %s" % (v(T0), v(T0), v(T1)))
        e("v_add_f32 %s, %s, %s" % (v(T2), v(T2), v(T3)))
        e("v_add_f32 %s, %s, %s" % (v(T0), v(T0), v(T2)))
        e("v_mov_b32 %s, %s" % (v(T1), v(T0)))
        e("s_nop 1")
        e("v_permlane32_swap_b32 %s, %s" % (v(T0), v(T1)))
        e("s_nop 1")
        e("v_add_f32 %s, %s, %s" % (v(T0), v(T0), v(T1)))
        e("v_rcp_f32 %s, %s" % (v(T0), v(T0)))
        e("s_nop 0")
        for i in range(16):
            e("v_mul_f32 %s, %s, %s" % (v(S + i), v(S + i), v(T0)))
            if i & 1 and i > 1:
                e(cvt(PF + (i >> 1) - 1, S + i - 3))
        e(cvt(PF + 7, S + 14))
        e("s_nop 1")
    items[n_s - 1]["post"] = [softmax]
    items[n_s - 1]["issue"] = vtags
    OB = QB
    for t in range(4):
        for m in range(2):
            items.append(dict(mfma="v_mfma_f32_32x32x16_bf16 %s, %s, %s, %s" % (
                v(ACC + 16 * t, 16), v(AF + 8 * t + 4 * m, 4), v(PF + 4 * m, 4),
                "0" if m == 0 else v(ACC + 16 * t, 16)),
                needs=[("V", t, m, 0), ("V", t, m, 1)], frate=6))
    n_pv = len(items)
    for t in range(4):
        for m in range(2):
            for i in range(4):
                fills.append(dict(txt=cvt(OB + 8 * t + 4 * m + i, ACC + 16 * t + 8 * m + 2 * i),
                                  gate=n_s + 2 * t + 1, after=n_s + 2 * t + 1, id=("O", 2 * t + m, i)))
            fills.append(dict(txt="ds_write_b128 %s, %s offset:%d" % (v(VOW), v(OB + 8 * t + 4 * m, 4),
                                                                    (2 * t + m) * 1024),
                              gate=n_s + 2 * t + 1, tag=("OW", t, m), id=("OW", 2 * t + m)))

    PO = KF
    A2 = AF
    ACC2 = 64
    STG = 96
    NA2 = o.na2
    last_use = [n_s + b for b in range(8)]
    an = 0
    for c in range(9):
        sg = 10 + c
        slot = sg % NSLOT
        cbase = len(items)
        for j in range(16):
            ab = an % NA2; an += 1
            sgate = -1 if c == 0 else (cbase - 16 + o.bpos2)
            g = max(sgate, last_use[ab])
            va = VWO + (j >> 3) + (2 if slot >= 2 else 0)
            off = (slot & 1) * 32768 + (j & 7) * 2048
            if c == 0 and j >= 8:
                rd = dict(txt="ds_read_b128 %s, %s offset:%d" % (v(PO + 4 * (j - 8), 4), v(VOR), (j - 8) * 1024),
                          tag=("PO", j - 8), gate=cbase + o.opos, fneeds=[("OW", 7)])
                if j == 8:
                    rd["pre"] = barrier("BO", True)
                reads.append(rd)
            for i in range(2):
                rd = dict(txt="ds_read_b64_tr_b16 %s, %s offset:%d" % (
                    v(A2 + 4 * ab + 2 * i, 2), v(va), off + i * 512), tag=("A2", c, j, i), gate=g)
                if j == 0 and i == 0 and c > 0:
                    rd["pre"] = barrier("B%d" % sg, dr)
                reads.append(rd)
            last_use[ab] = cbase + j
            acc = ACC2 + 16 * (c & 1)
            bsrc = OB + 4 * j if j < 8 else PO + 4 * (j - 8)
            needs = [("A2", c, j, 0), ("A2", c, j, 1)]
            it = dict(mfma="v_mfma_f32_32x32x16_bf16 %s, %s, %s, %s" % (
                v(acc, 16), v(A2 + 4 * ab, 4), v(bsrc, 4), "0" if j == 0 else v(acc, 16)), needs=needs,
                frate=o.frate2, rate=o.rate2)
            if c == 0:
                it["frate"] = 5
                if j >= 8:
                    needs.append(("PO", j - 8))
                else:
                    it["fneeds"] = [("O", j, 3)]
                if j == 0:
                    it["fneeds"].append(("O", 1, 3))
            if c == 1 and j == 0:
                it["fneeds"] = [("O", 3, 3)]
            items.append(it)

    for c in range(9):
        last = n_pv + 16 * c + 15
        g = last + 2 if c < 8 else last
        acc = ACC2 + 16 * (c & 1)
        fills.append(dict(fn=lambda pp, c=c: setattr(pp, "ninstr", pp.ninstr + stage_off(pp.a, c, 4096, S_T1, o.rot)),
                          gate=g))
        for m in range(2):
            sg = STG + 8 * (c & 1) + 4 * m
            for i in range(4):
                fills.append(dict(txt=cvt(sg + i, acc + 8 * m + 2 * i), gate=g, after=last, force=(c == 8)))
            fills.append(dict(txt="buffer_store_dwordx4 %s, %s, %s, %s offen offset:%d%s" % (
                v(sg, 4), v(VP), s(R_P, 4), s(S_T1), m * 1024, o.st_flags), gate=g))
    p.run(items, reads, fills, o.rate, 2)
    st.stamp()
    if o.stamps:
        a("s_waitcnt vmcnt(0)")
        st.stamp()
    st.flush()


def reduce_kernel(a, o):
    name = o.red_name
    a.raw(".globl %s\n.p2align 8\n.type %s,@function\n%s:" % (name, name, name))
    o.end = "L_red_end"
    st = Stamper(a, o.stamps)
    a("s_cmp_ge_u32 s2, 288")
    a("s_cbranch_scc1 %s" % o.end)
    a("s_load_dwordx2 %s, s[0:1], 80" % s(POUT, 2))
    a("s_load_dwordx2 %s, s[0:1], 96" % s(PWS, 2))
    st.stamp()
    if o.stamps:
        a("s_memtime %s" % s(S_CY0, 2))
    a("v_lshrrev_b32 v1, 6, v0")
    a("v_and_b32 v0, 63, v0")
    a("v_readfirstlane_b32 %s, v1" % s(S_WAVE))
    a("s_lshl_b32 s4, s2, 2")
    a("s_add_u32 s4, s4, %s" % s(S_WAVE))
    a("s_and_b32 s5, s4, 1")
    a("s_lshr_b32 s4, s4, 1")
    a("s_mul_i32 s6, s4, 3641")
    a("s_lshr_b32 s6, s6, 16")
    a("s_mul_i32 s7, s6, 18")
    a("s_sub_u32 s7, s4, s7")
    a("s_and_b32 s36, s6, 1")
    a("s_lshr_b32 s6, s6, 1")
    a("s_mul_i32 s37, s6, %d" % (16 * PART))
    a("s_mul_i32 s38, s36, 18")
    a("s_add_u32 s38, s38, s7")
    a("s_lshl_b32 s38, s38, 1")
    a("s_add_u32 s38, s38, s5")
    a("s_lshl_b32 s38, s38, 10")
    a("v_lshl_add_u32 v1, v0, 4, s38")
    a("s_waitcnt lgkmcnt(0)")
    srd(a, R_P, PWS, 37, 16 * PART)
    srd(a, R_X, POUT, None, 512 * 2304)
    a("s_mov_b32 s38, 0")
    for pidx in range(16):
        a("buffer_load_dwordx4 %s, v1, %s, s38 offen%s" % (v(16 + 4 * pidx, 4), s(R_P, 4), o.ld_flags))
        if pidx < 15:
            a("s_add_u32 s38, s38, %d" % PART)
    a("s_and_b32 s37, s6, 7")
    a("s_lshl_b32 s37, s37, 1")
    a("s_add_u32 s37, s37, s36")
    a("s_mul_i32 s37, s37, %d" % (32 * 2304))
    a("s_lshr_b32 s38, s6, 3")
    a("s_mul_i32 s38, s38, 1152")
    a("s_add_u32 s37, s37, s38")
    a("s_lshl_b32 s38, s7, 6")
    a("s_add_u32 s37, s37, s38")
    a("s_lshl_b32 s38, s5, 5")
    a("s_add_u32 s37, s37, s38")
    a("v_and_b32 v2, 31, v0")
    a("v_mul_u32_u24 v2, 2304, v2")
    a("v_lshrrev_b32 v3, 5, v0")
    a("v_lshl_add_u32 v2, v3, 4, v2")
    a("v_add_u32 v2, s37, v2")
    for pidx in range(16):
        a("s_waitcnt vmcnt(%d)" % (15 - pidx))
        for d in range(4):
            r = 16 + 4 * pidx + d
            if pidx == 0:
                a("v_lshlrev_b32 %s, 16, %s" % (v(8 + 2 * d), v(r)))
                a("v_and_b32 %s, 0xffff0000, %s" % (v(9 + 2 * d), v(r)))
            else:
                a("v_lshlrev_b32 v4, 16, %s" % v(r))
                a("v_and_b32 v5, 0xffff0000, %s" % v(r))
                a("v_add_f32 %s, %s, v4" % (v(8 + 2 * d), v(8 + 2 * d)))
                a("v_add_f32 %s, %s, v5" % (v(9 + 2 * d), v(9 + 2 * d)))
    for d in range(4):
        a("v_cvt_pk_bf16_f32 %s, %s, %s" % (v(4 + d), v(8 + 2 * d), v(9 + 2 * d)))
    a("buffer_store_dwordx4 v[4:7], v2, %s, 0 offen" % s(R_X, 4))
    if o.stamps:
        a("s_waitcnt vmcnt(0)")
        st.stamp()
        st.flush(koff=1 << 20)
    if o.probe:
        wg, w, i, j, K = [int(x) for x in o.probe.split(",")]
        a("s_cmp_lg_u32 s2, 0")
        a("s_cbranch_scc1 %s" % o.end)
        a("s_cmp_lg_u32 %s, 0" % s(S_WAVE))
        a("s_cbranch_scc1 %s" % o.end)
        a("s_memrealtime s[40:41]")
        a("s_mov_b32 s37, 0x%x" % (STAMP_OFF + (wg * 8 + w) * 128))
        srd(a, R_ST, PWS, 37, 128)
        a("v_mov_b32 v1, 0")
        a("buffer_load_dword v2, v1, %s, 0 offen offset:%d sc1" % (s(R_ST, 4), 8 * i))
        a("buffer_load_dword v3, v1, %s, 0 offen offset:%d sc1" % (s(R_ST, 4), 8 * max(j, 0)))
        a("s_waitcnt vmcnt(0) lgkmcnt(0)")
        a("v_readfirstlane_b32 s42, v2")
        a("v_readfirstlane_b32 s43, v3")
        a("s_nop 4")
        if j == -1:
            a("s_sub_u32 s42, s40, s42")
        elif j == -2:
            a("s_lshr_b32 s42, s42, 4")
        else:
            a("s_sub_u32 s42, s43, s42")
        a("s_min_u32 s42, s42, 20000")
        a("s_mul_i32 s42, s42, %d" % K)
        a("s_mov_b32 s44, 0")
        a.label("L_probe")
        a("s_memrealtime s[38:39]")
        a("s_add_u32 s44, s44, 1")
        a("s_waitcnt lgkmcnt(0)")
        a("s_sub_u32 s43, s38, s40")
        a("s_cmp_gt_u32 s44, 2000000")
        a("s_cbranch_scc1 %s" % o.end)
        a("s_cmp_lt_u32 s43, s42")
        a("s_cbranch_scc1 L_probe")
    a.label(o.end)
    a("s_endpgm")


def gen(o):
    a = Asm()
    o.main_name = "main_kernel"
    o.red_name = "reduce_kernel"
    hdr = HEADER
    hdr += "; @launch kernel=%s grid=(256,1,1) block=(448,1,1) lds=%d\n" % (o.main_name, LDS_TOTAL)
    if not o.noreduce:
        hdr += "; @launch kernel=%s grid=(288,1,1) block=(256,1,1) lds=0\n" % (o.red_name)
    a.raw(hdr + '.amdgcn_target "amdgcn-amd-amdhsa--gfx950"\n.text')
    main_kernel(a, o)
    reduce_kernel(a, o)
    a.raw('.section .rodata,"a"')
    a.raw(kernel_desc(o.main_name, 256, 102))
    a.raw(kernel_desc(o.red_name, 80, 102))
    return a.text()


def parse(argv):
    ap = argparse.ArgumentParser()
    ap.add_argument("-o", default="k2.s")
    ap.add_argument("--stamps", type=int, default=0)
    ap.add_argument("--cstamps", default="B1,B4,B8,B9,B9x,BO,B12,B15,B18")
    ap.add_argument("--rot", type=int, default=0)
    ap.add_argument("--nt", type=int, default=1)
    ap.add_argument("--nt_x", type=int, default=0)
    ap.add_argument("--mode", default="drain")
    ap.add_argument("--maxout", type=int, default=12)
    ap.add_argument("--rate", type=int, default=3)
    ap.add_argument("--frate2", type=int, default=2)
    ap.add_argument("--rate2", type=int, default=3)
    ap.add_argument("--bpos", type=int, default=1)
    ap.add_argument("--bpos2", type=int, default=12)
    ap.add_argument("--opos", type=int, default=3)
    ap.add_argument("--na2", type=int, default=8)
    ap.add_argument("--nb", type=int, default=3)
    ap.add_argument("--prio", type=int, default=0)
    ap.add_argument("--noload", type=int, default=0)
    ap.add_argument("--probe", default="")
    ap.add_argument("--noreduce", type=int, default=0)
    ap.add_argument("--skip", default="")
    ap.add_argument("--st_flags", default="")
    ap.add_argument("--ld_flags", default="")
    ap.add_argument("--pf_code", type=int, default=3)
    ap.add_argument("--pf_win", type=int, default=4)
    ap.add_argument("--wo_order", default="chunk")
    ap.add_argument("--pf_list", default="q0,x0,q1,q2,x1,q3,q4,x2,k0,k1,v0,v1,o0,o1,o2,o3,o4")
    return ap.parse_args(argv)


if __name__ == "__main__":
    o = parse(sys.argv[1:])
    open(o.o, "w").write(gen(o))
    print("wrote", o.o)
```

```python
import sys, argparse, math, struct
from asmlib import Asm, v, s, kernel_desc, HEADER

NAME = "concat_heads__gqa_block_cached__gqa_block_cached__near_ridge"
STAMP_OFF = 200 << 20

W0 = 0
X0 = 131072
LDS_TOTAL = 163840
PART = 73728
NSLOT = 4
ST_KV = 9
NST = 19

S_WAVE, S_BR, S_KVH, S_BP, S_T = 3, 4, 5, 6, 7
R_X, R_WQ, R_WO, R_K, R_V, R_P, R_ST = 8, 12, 16, 20, 24, 28, 32
KA = 36
PX, PK, PV, PWQ, PWO = KA, KA + 2, KA + 4, KA + 6, KA + 8
POUT, PDBG, PWS = KA + 20, KA + 22, KA + 24
S_T1, S_T2, S_T3, S_T4 = 88, 89, 90, 91
S_BL, S_HH, S_C, S_LW = 92, 93, 94, 95
S_ROT = 62
S_STAMP = 64
NSTAMP = 12
S_CY0, S_CY1 = 96, 98


def srd(a, r, base, off_s, nbytes):
    if off_s is None:
        a("s_mov_b32 %s, %s" % (s(r), s(base)))
        a("s_mov_b32 %s, %s" % (s(r + 1), s(base + 1)))
    else:
        a("s_add_u32 %s, %s, %s" % (s(r), s(base), s(off_s)))
        a("s_addc_u32 %s, %s, 0" % (s(r + 1), s(base + 1)))
    a("s_mov_b32 %s, 0x%x" % (s(r + 2), nbytes))
    a("s_mov_b32 %s, 0x00020000" % s(r + 3))


class Stamper:
    def __init__(self, a, on, n=0):
        self.a, self.on, self.n = a, on, n

    def stamp(self):
        if self.on:
            assert self.n < NSTAMP
            self.a("s_memrealtime %s" % s(S_STAMP + 2 * self.n, 2))
            self.n += 1

    def flush(self, koff=0):
        a = self.a
        if not self.on:
            return
        a("s_memtime %s" % s(S_CY1, 2))
        a("s_waitcnt lgkmcnt(0)")
        a("s_sub_u32 %s, %s, %s" % (s(S_CY1), s(S_CY1), s(S_CY0)))
        a("s_mov_b32 %s, 0" % s(S_CY1 + 1))
        a("s_lshl_b32 %s, s2, 3" % s(S_T1))
        a("s_add_u32 %s, %s, %s" % (s(S_T1), s(S_T1), s(S_WAVE)))
        a("s_lshl_b32 %s, %s, 7" % (s(S_T1), s(S_T1)))
        a("s_add_u32 %s, %s, 0x%x" % (s(S_T1), s(S_T1), STAMP_OFF + koff))
        srd(a, R_ST, PWS, S_T1, 128)
        a("v_mov_b32 v1, 0")
        for i in range(16):
            src = S_STAMP + 2 * i if i < self.n else (S_CY1 if i == 15 else None)
            a("v_mov_b32 v2, %s" % (s(src) if src else "0"))
            a("v_mov_b32 v3, %s" % (s(src + 1) if src else "0"))
            a("buffer_store_dwordx2 v[2:3], v1, %s, 0 offen offset:%d" % (s(R_ST, 4), 8 * i))
            a("s_nop 1")


class Pipe:
    def __init__(self, a, maxout=14):
        self.a = a
        self.q = []
        self.maxout = maxout
        self.ninstr = 0
        self.skip = []
        self.fill = []

    def emit(self, txt):
        if self.skip:
            txt = "\n".join(x for x in txt.split("\n") if not any(k in x for k in self.skip))
        self.a(txt)
        self.ninstr += len([x for x in txt.split("\n") if x.strip()])

    def nop(self, n):
        while n > 0:
            k = min(n, 16)
            self.emit("s_nop %d" % (k - 1))
            self.ninstr += k - 1
            n -= k

    def lds(self, txt, tag):
        self.emit(txt)
        self.q.append(tag)

    def need(self, tags):
        idx = -1
        for i, t in enumerate(self.q):
            if t in tags:
                idx = i
        if idx >= 0:
            n = len(self.q) - idx - 1
            assert n <= 15
            self.emit("s_waitcnt lgkmcnt(%d)" % n)
            self.q = self.q[idx + 1:]

    def drain(self):
        self.emit("s_waitcnt lgkmcnt(0)")
        self.q = []

    def do_fill(self, items, f):
        if f.get("after") is not None:
            d = self.ninstr - items[f["after"]]["at"]
            if d < 12:
                self.nop(12 - d)
        if f.get("tag"):
            self.lds(f["txt"], f["tag"])
        elif f.get("fn"):
            f["fn"](self)
        else:
            self.emit(f["txt"])
        if f.get("id"):
            self.done.add(f["id"])

    def run(self, items, reads, fills, rate, frate):
        ri = 0
        fi = 0
        issued = set()
        self.done = set()

        def issue_one():
            nonlocal ri
            r = reads[ri]
            if r.get("pre"):
                r["pre"](self)
            self.lds(r["txt"], r["tag"])
            issued.add(r["tag"])
            ri += 1

        def fill_until(fid):
            nonlocal fi
            while fid not in self.done:
                self.do_fill(items, fills[fi])
                fi += 1

        while ri < len(reads) and reads[ri]["gate"] < 0 and len(self.q) < self.maxout:
            issue_one()
        for i, it in enumerate(items):
            for fid in it.get("fneeds", []):
                if fid not in self.done:
                    fill_until(fid)
                    self.nop(2)
            for t in it["needs"]:
                while t not in issued:
                    assert reads[ri]["gate"] < i, (i, reads[ri])
                    for fid in reads[ri].get("fneeds", []):
                        fill_until(fid)
                    issue_one()
            self.need(set(it["needs"]))
            self.emit(it["mfma"])
            it["at"] = self.ninstr
            n = 0
            while ri < len(reads) and reads[ri]["gate"] <= i and n < it.get("rate", rate) and (
                    len(self.q) < self.maxout or reads[ri].get("pre")) and all(
                        fid in self.done for fid in reads[ri].get("fneeds", [])):
                issue_one()
                n += 1
            for t in it.get("issue", []):
                while t not in issued:
                    assert reads[ri]["gate"] <= i
                    if len(self.q) >= 15:
                        self.need({self.q[0]})
                    issue_one()
            n = 0
            while fi < len(fills) and fills[fi]["gate"] <= i and n < it.get("frate", frate):
                if fills[fi].get("after") is not None and not fills[fi].get("force") and (
                        self.ninstr - items[fills[fi]["after"]]["at"] < 12):
                    break
                self.do_fill(items, fills[fi])
                fi += 1
                n += 1
            for p in it.get("post", []):
                p(self)
        while fi < len(fills):
            self.do_fill(items, fills[fi])
            fi += 1
        assert ri == len(reads)


def barrier_plan(o):
    ahead = NSLOT - 1 if o.mode == "drain" else NSLOT - 2
    first = list(range(ahead + (0 if o.mode == "drain" else 0) + 1)) if o.mode == "drain" else list(range(NSLOT - 1))
    pro = list(range(NSLOT))
    nxt = NSLOT
    plan = []

    def freed(upto):
        nonlocal nxt
        out = []
        while nxt < NST and nxt - NSLOT <= upto:
            out.append(nxt)
            nxt += 1
        return out
    lag = 1 if o.mode == "drain" else 2
    for sg in range(0, ST_KV + 1):
        plan.append(("B%d" % sg, sg, freed(sg - lag)))
    plan.append(("B9x", ST_KV + 1, freed(ST_KV)))
    plan.append(("BO", None, []))
    for sg in range(ST_KV + 2, NST):
        plan.append(("B%d" % sg, sg, freed(sg - lag)))
    return pro, plan


def stage_off(a, sidx, mult, dst, rot):
    if not rot:
        a("s_mov_b32 %s, %d" % (s(dst), sidx * mult))
        return 1
    a("s_add_u32 %s, %s, %d" % (s(dst), s(S_ROT), sidx))
    a("s_cmp_ge_u32 %s, 9" % s(dst))
    a("s_cselect_b32 %s, 9, 0" % s(S_T))
    a("s_sub_u32 %s, %s, %s" % (s(dst), s(dst), s(S_T)))
    a("s_mul_i32 %s, %s, %d" % (s(dst), s(dst), mult))
    return 5


def main_kernel(a, o):
    st = Stamper(a, o.stamps)
    name = o.main_name
    a.raw(".globl %s\n.p2align 8\n.type %s,@function\n%s:" % (name, name, name))
    o.end = "L_main_end"
    a("s_cmp_ge_u32 s2, 256")
    a("s_cbranch_scc1 %s" % o.end)
    a("s_load_dwordx16 %s, s[0:1], 0" % s(KA, 16))
    a("s_load_dwordx4 %s, s[0:1], 64" % s(KA + 16, 4))
    a("s_load_dwordx4 %s, s[0:1], 80" % s(KA + 20, 4))
    a("s_load_dwordx2 %s, s[0:1], 96" % s(KA + 24, 2))
    st.stamp()
    if o.stamps:
        a("s_memtime %s" % s(S_CY0, 2))
    a("v_lshrrev_b32 v1, 6, v0")
    a("v_and_b32 v0, 63, v0")
    a("v_readfirstlane_b32 %s, v1" % s(S_WAVE))
    a("s_lshr_b32 %s, s2, 2" % s(S_BR))
    a("s_and_b32 %s, %s, 1" % (s(S_BR), s(S_BR)))
    a("s_and_b32 %s, s2, 3" % s(S_KVH))
    a("s_lshl_b32 %s, %s, 2" % (s(S_KVH), s(S_KVH)))
    a("s_lshr_b32 %s, s2, 6" % s(S_T))
    a("s_add_u32 %s, %s, %s" % (s(S_KVH), s(S_KVH), s(S_T)))
    a("s_lshr_b32 %s, s2, 3" % s(S_BP))
    a("s_and_b32 %s, %s, 7" % (s(S_BP), s(S_BP)))
    if o.rot:
        a("s_mul_i32 %s, %s, %d" % (s(S_ROT), s(S_BP), o.rot))
        a("s_mul_i32 %s, %s, 57" % (s(S_T), s(S_ROT)))
        a("s_lshr_b32 %s, %s, 9" % (s(S_T), s(S_T)))
        a("s_mul_i32 %s, %s, 9" % (s(S_T), s(S_T)))
        a("s_sub_u32 %s, %s, %s" % (s(S_ROT), s(S_ROT), s(S_T)))
    OX, OWQ, OWO, OKV = 63, 100, 101, R_ST
    a("s_mul_i32 %s, %s, %d" % (s(OX), s(S_BP), 64 * 1152))
    a("s_lshl_b32 %s, %s, 9" % (s(OWQ), s(S_KVH)))
    a("s_mul_i32 %s, %s, %d" % (s(OWO), s(S_KVH), 256 * 1152))
    a("s_lshl_b32 %s, %s, 5" % (s(S_T), s(S_BP)))
    a("s_add_u32 %s, %s, %s" % (s(S_T), s(S_T), s(S_KVH)))
    a("s_lshl_b32 %s, %s, 13" % (s(OKV), s(S_T)))
    a("s_cmp_ge_u32 %s, 3" % s(S_WAVE))
    a("s_cbranch_scc1 L_compute")
    a("s_cmp_eq_u32 %s, 0" % s(S_WAVE))
    a("s_cbranch_scc0 L_loader")

    def ptrs():
        a("s_waitcnt lgkmcnt(0)")
        a("s_cmp_eq_u32 %s, 0" % s(S_BR))
        for i in range(5):
            a("s_cselect_b64 %s, %s, %s" % (s(KA + 2 * i, 2), s(KA + 2 * i, 2), s(KA + 10 + 2 * i, 2)))
        srd(a, R_WQ, PWQ, OWQ, 575 * 8192 + 512)
        srd(a, R_X, PX, OX, 64 * 1152)
        srd(a, R_K, PK, OKV, 131072 + 8192)
        srd(a, R_V, PV, OKV, 131072 + 8192)
        srd(a, R_WO, PWO, OWO, 256 * 1152)

    service(a, o, Stamper(a, o.stamps, 1 if o.stamps else 0), ptrs)
    a("s_endpgm")
    a.label("L_loader")
    loader(a, o, Stamper(a, o.stamps, 1 if o.stamps else 0), ptrs)
    a("s_endpgm")
    a.label("L_compute")
    compute(a, o, Stamper(a, o.stamps, 1 if o.stamps else 0))
    a.label(o.end)
    a("s_endpgm")
    a.label("L_code_end")


def service(a, o, st, ptrs):
    VQ, VX, VKV, VO, VC = 4, 5, 6, 7, 8
    nt = " nt" if o.nt else ""
    a("v_lshrrev_b32 v1, 5, v0")
    a("v_lshlrev_b32 v1, 6, v1")
    a("v_bfe_u32 v2, v0, 2, 3")
    a("v_add_u32 v1, v1, v2")
    a("s_lshl_b32 %s, %s, 3" % (s(S_T), s(S_BP)))
    a("v_add_u32 v1, %s, v1" % s(S_T))
    a("v_lshlrev_b32 v1, 13, v1")
    a("v_and_b32 v2, 3, v0")
    a("v_lshl_add_u32 %s, v2, 7, v1" % v(VQ))
    a("s_lshr_b32 %s, s2, 6" % s(S_T))
    a("s_lshl_b32 %s, %s, 4" % (s(S_T), s(S_T)))
    a("v_and_b32 v1, 15, v0")
    a("v_add_u32 v1, %s, v1" % s(S_T))
    a("v_mul_u32_u24 v1, 1152, v1")
    a("v_lshrrev_b32 v2, 4, v0")
    a("v_lshl_add_u32 %s, v2, 7, v1" % v(VX))
    a("v_lshlrev_b32 %s, 7, v0" % v(VKV))
    if o.wo_order == "chunk":
        a("s_lshl_b32 %s, %s, 5" % (s(S_T), s(S_BP)))
        a("v_and_b32 v1, 31, v0")
        a("v_add_u32 v1, %s, v1" % s(S_T))
        a("v_mul_u32_u24 v1, 1152, v1")
        a("v_lshrrev_b32 v2, 5, v0")
        a("v_lshl_add_u32 %s, v2, 7, v1" % v(VO))
        wo_step = 256
    else:
        a("s_mul_i32 %s, %s, %d" % (s(S_T), s(S_BP), 32 * 1152))
        a("v_add_u32 %s, %s, %s" % (v(VO), s(S_T), v(VKV)))
        wo_step = 8192
    ptrs()
    st.stamp()
    lst = []
    if o.pf_code:
        a("s_getpc_b64 %s" % s(R_P, 2))
        a.label("L_pc")
        a("s_mov_b32 %s, L_code_end-L_pc" % s(R_P + 2))
        a("s_mov_b32 %s, 0x00020000" % s(R_P + 3))
        for i in range(o.pf_code):
            lst.append((VKV, R_P, i * 8192, ""))
    Q = [(VQ, R_WQ, i * 1048576, nt) for i in range(5)]
    X = [(VX, R_X, i * 512, " nt" if o.nt_x else "") for i in range(3)]
    K = [(VKV, R_K, i * 131072, nt) for i in range(2)]
    V = [(VKV, R_V, i * 131072, nt) for i in range(2)]
    O = [(VO, R_WO, i * wo_step, nt) for i in range(5)]
    d = dict(q=Q, x=X, k=K, v=V, o=O)
    for tok in o.pf_list.split(","):
        if tok:
            lst.append(d[tok[0]][int(tok[1:])])
    for i, (vo, r, off, fl) in enumerate(lst):
        if i >= o.pf_win:
            a("s_waitcnt vmcnt(%d)" % (o.pf_win - 1))
        a("s_mov_b32 %s, %d" % (s(S_T), off))
        a("buffer_load_dword %s, %s, %s, %s offen%s" % (v(16 + i), v(vo), s(r, 4), s(S_T), fl))
    st.stamp()
    if o.stamps:
        a("s_waitcnt vmcnt(0)")
        st.stamp()
        st.flush()


def loader(a, o, st, ptrs):
    NL = 2
    LW = S_LW
    VWQ, VX, VWO, VK0, VK1, VV = 10, 11, 12, 13, 14, 15
    a("s_sub_u32 %s, %s, 1" % (s(LW), s(S_WAVE)))
    a("v_lshrrev_b32 v1, 5, v0")
    a("s_lshl_b32 %s, %s, 1" % (s(S_T), s(LW)))
    a("v_add_u32 v2, %s, v1" % s(S_T))
    a("v_lshlrev_b32 v2, 2, v2")
    a("v_and_b32 v3, 31, v0")
    a("v_xor_b32 v2, v2, v3")
    a("v_lshlrev_b32 v2, 4, v2")
    a("v_lshl_add_u32 v2, v1, 13, v2")
    a("s_lshl_b32 %s, %s, 14" % (s(S_T), s(LW)))
    a("v_add_u32 %s, %s, v2" % (v(VWQ), s(S_T)))
    a("v_lshrrev_b32 v1, 3, v0")
    a("s_lshl_b32 %s, %s, 3" % (s(S_T), s(LW)))
    a("v_add_u32 v1, %s, v1" % s(S_T))
    a("v_mul_u32_u24 v1, 1152, v1")
    a("v_lshrrev_b32 v2, 4, v0")
    a("s_lshl_b32 %s, %s, 2" % (s(S_T), s(LW)))
    a("v_add_u32 v2, %s, v2" % s(S_T))
    a("v_and_b32 v3, 7, v0")
    a("v_xor_b32 v2, v2, v3")
    a("v_lshl_add_u32 %s, v2, 4, v1" % v(VX))
    a("v_lshrrev_b32 v2, 2, v0")
    a("v_and_b32 v2, 4, v2")
    a("v_xor_b32 v2, v2, v3")
    a("v_lshl_add_u32 %s, v2, 4, v1" % v(VWO))
    a("v_lshrrev_b32 v1, 4, v0")
    a("v_and_b32 v3, 15, v0")
    a("v_xor_b32 v2, v1, v3")
    a("v_lshlrev_b32 v2, 4, v2")
    a("v_lshl_add_u32 v2, v1, 8, v2")
    a("s_lshl_b32 %s, %s, 6" % (s(S_T), s(LW)))
    a("v_xor_b32 v2, %s, v2" % s(S_T))
    a("s_lshl_b32 %s, %s, 10" % (s(S_T4), s(LW)))
    a("v_add_u32 %s, %s, v2" % (v(VK0), s(S_T4)))
    a("v_xor_b32 %s, 128, %s" % (v(VK1), v(VK0)))
    a("v_lshlrev_b32 v2, 2, v1")
    a("v_xor_b32 v2, v2, v3")
    a("v_lshlrev_b32 v2, 4, v2")
    a("v_lshl_add_u32 v2, v1, 8, v2")
    a("v_add_u32 %s, %s, v2" % (v(VV), s(S_T4)))
    ptrs()
    st.stamp()
    nt = " nt" if o.nt else ""
    ntx = " nt" if o.nt_x else ""
    cnt = {}

    def dma(vo, r, soff, lds, fl, sprev):
        a("s_add_u32 m0, %s, %d" % (s(S_T4), lds))
        if sprev is None:
            a("s_nop 0")
        else:
            a("s_add_u32 %s, %s, %d" % (s(soff), s(soff), sprev))
        a("buffer_load_dwordx4 %s, %s, %s offen%s lds" % (v(vo), s(r, 4), s(soff), fl))

    def issue(sg):
        slot = sg % NSLOT
        n = 0
        if o.noload:
            cnt[sg] = 0
            return
        if sg < 9:
            stage_off(a, sg, 128, S_T2, o.rot)
            a("s_lshl_b32 %s, %s, 12" % (s(S_T1), s(S_T2)))
            for i in range(4):
                dma(VX, R_X, S_T2, X0 + slot * 8192 + i * 2048, ntx, 18432 if i else None)
            for i in range(16):
                dma(VWQ, R_WQ, S_T1, W0 + slot * 32768 + i * 2048, nt, 32768 if i else None)
            n = 20
        elif sg == ST_KV:
            for t, r in enumerate((R_K, R_V)):
                a("s_mov_b32 %s, 0" % s(S_T1))
                for b in range(2):
                    for ii in range(4):
                        vo = (VK0 + (ii & 1)) if t == 0 else VV
                        step = None if (b == 0 and ii == 0) else (2048 if ii else 131072 - 3 * 2048)
                        dma(vo, r, S_T1, W0 + slot * 32768 + t * 16384 + b * 8192 + ii * 2048, nt, step)
            n = 16
        else:
            stage_off(a, sg - 10, 128, S_T1, o.rot)
            for i in range(16):
                dma(VWO, R_WO, S_T1, W0 + slot * 32768 + i * 2048, nt, 18432 if i else None)
            n = 16
        cnt[sg] = n

    pro, plan = barrier_plan(o)
    seq = []

    def wait_for(sg):
        k = seq.index(sg)
        n = sum(cnt[x] for x in seq[k + 1:])
        assert n <= 63
        a("s_waitcnt vmcnt(%d)" % n)

    for sg in pro:
        if sum(cnt[x] for x in seq) + 20 > 63:
            wait_for(seq[0])
        issue(sg)
        seq.append(sg)
    st.stamp()
    landed = set()
    for nm, need, nxt in plan:
        if need is not None:
            wait_for(need)
        if nm in ("B0", "B1", "B4", "B8", "B9", "B9x", "B12", "B15", "B18"):
            st.stamp()
        a("s_barrier")
        for sg in nxt:
            out = sum(cnt[x] for x in seq[seq.index(need) + 1:]) if need is not None else 0
            if out + 20 > 63:
                wait_for(seq[seq.index(need) + 1])
            issue(sg)
            seq.append(sg)
    st.flush()


def compute(a, o, st):
    BL, HH = S_BL, S_HH
    CW = S_LW
    a("s_sub_u32 %s, %s, 3" % (s(CW), s(S_WAVE)))
    a("s_and_b32 %s, %s, 1" % (s(BL), s(CW)))
    a("s_lshr_b32 %s, %s, 1" % (s(HH), s(CW)))

    VA = 8
    VX = 16
    VK = 20
    VV = 21
    VOW, VOR = 25, 26
    VWO = 27
    VP = 31
    T0, T1, T2, T3 = 32, 33, 34, 35
    VH, VR, VTR = 36, 37, 38
    BF = 48
    ACC = 64
    AF = 128
    PF = 160
    QB = 168
    SA = 200
    KF = 216
    a("v_lshrrev_b32 %s, 5, v0" % v(VH))
    a("v_bfe_u32 %s, v0, 2, 2" % v(VR))
    a("v_and_b32 %s, 1, v0" % v(T0))
    a("v_lshlrev_b32 %s, 4, %s" % (v(T0), v(T0)))
    a("v_and_b32 %s, 2, v0" % v(T1))
    a("v_lshl_add_u32 %s, %s, 2, %s" % (v(T0), v(T1), v(T0)))
    a("v_and_b32 %s, 16, v0" % v(T1))
    a("v_lshl_add_u32 %s, %s, 1, %s" % (v(VTR), v(T1), v(T0)))
    a("v_lshl_add_u32 %s, %s, 3, %s" % (v(T2), v(VH), v(VR)))
    a("v_lshl_add_u32 %s, %s, 9, %s" % (v(T0), v(T2), v(VTR)))
    a("s_lshl_b32 %s, %s, 8" % (s(S_T), s(HH)))
    a("v_add_u32 %s, %s, %s" % (v(T0), s(S_T), v(T0)))
    for t in range(4):
        a("v_xor_b32 %s, %d, %s" % (v(T1), t, v(VR)))
        a("v_lshl_add_u32 %s, %s, 6, %s" % (v(VA + t), v(T1), v(T0)))
        a("v_add_u32 %s, 0x10000, %s" % (v(VA + 4 + t), v(VA + t)))
    KVB = W0 + (ST_KV % NSLOT) * 32768
    a("v_lshl_add_u32 %s, %s, 8, %s" % (v(T0), v(T2), v(VTR)))
    a("s_lshl_b32 %s, %s, 13" % (s(S_T), s(BL)))
    a("s_add_u32 %s, %s, %d" % (s(S_T), s(S_T), KVB + 16384))
    a("v_add_u32 %s, %s, %s" % (v(T0), s(S_T), v(T0)))
    for t in range(4):
        a("v_xor_b32 %s, %d, %s" % (v(T1), t, v(VR)))
        a("v_lshl_add_u32 %s, %s, 6, %s" % (v(VV + t), v(T1), v(T0)))
    a("v_lshl_add_u32 %s, %s, 7, %s" % (v(T0), v(T2), v(VTR)))
    a("v_lshrrev_b32 %s, 1, %s" % (v(T1), v(VR)))
    a("v_xor_b32 %s, %s, %s" % (v(T1), s(HH), v(T1)))
    a("v_lshl_add_u32 %s, %s, 6, %s" % (v(T0), v(T1), v(T0)))
    a("s_lshl_b32 %s, %s, 14" % (s(S_T), s(HH)))
    a("v_add_u32 %s, %s, %s" % (v(VWO), s(S_T), v(T0)))
    a("v_xor_b32 %s, 0x4000, %s" % (v(VWO + 1), v(VWO)))
    a("v_add_u32 %s, 0x10000, %s" % (v(VWO + 2), v(VWO)))
    a("v_add_u32 %s, 0x10000, %s" % (v(VWO + 3), v(VWO + 1)))
    a("v_and_b32 %s, 31, v0" % v(T0))
    a("v_bfe_u32 %s, v0, 1, 3" % v(T1))
    a("v_xor_b32 %s, %s, %s" % (v(T1), v(T1), v(VH)))
    a("v_lshlrev_b32 %s, 4, %s" % (v(T1), v(T1)))
    a("v_lshl_add_u32 %s, %s, 7, %s" % (v(T1), v(T0), v(T1)))
    a("s_lshl_b32 %s, %s, 12" % (s(S_T), s(BL)))
    a("s_add_u32 %s, %s, %d" % (s(S_T), s(S_T), X0))
    a("v_add_u32 %s, %s, %s" % (v(VX), s(S_T), v(T1)))
    for j in range(1, 4):
        a("v_xor_b32 %s, %d, %s" % (v(VX + j), 32 * j, v(VX)))
    a("v_and_b32 %s, 0x13, %s" % (v(T1), v(T0)))
    a("v_and_b32 %s, 4, %s" % (v(T2), v(T0)))
    a("v_lshl_add_u32 %s, %s, 1, %s" % (v(T1), v(T2), v(T1)))
    a("v_and_b32 %s, 8, %s" % (v(T2), v(T0)))
    a("v_lshrrev_b32 %s, 1, %s" % (v(T2), v(T2)))
    a("v_add_u32 %s, %s, %s" % (v(T1), v(T1), v(T2)))
    a("v_and_b32 %s, 15, %s" % (v(T2), v(T1)))
    a("v_xor_b32 %s, %s, %s" % (v(T2), v(T2), v(VH)))
    a("v_lshlrev_b32 %s, 4, %s" % (v(T2), v(T2)))
    a("v_lshl_add_u32 %s, %s, 8, %s" % (v(T1), v(T1), v(T2)))
    a("s_lshl_b32 %s, %s, 13" % (s(S_T), s(BL)))
    a("s_add_u32 %s, %s, %d" % (s(S_T), s(S_T), KVB))
    a("v_add_u32 %s, %s, %s" % (v(VK), s(S_T), v(T1)))
    VK2 = 40
    for m in range(1, 8):
        a("v_xor_b32 %s, %d, %s" % (v(VK2 + m - 1), 32 * m, v(VK)))
    a("s_lshl_b32 %s, %s, 13" % (s(S_T), s(CW)))
    a("s_add_u32 %s, %s, %d" % (s(S_T), s(S_T), X0))
    a("v_lshl_add_u32 %s, v0, 4, %s" % (v(VOW), s(S_T)))
    a("v_xor_b32 %s, 0x4000, %s" % (v(VOR), v(VOW)))
    a("s_mul_i32 %s, %s, 18" % (s(S_T), s(BL)))
    a("s_add_u32 %s, %s, %s" % (s(S_T), s(S_T), s(HH)))
    a("s_lshl_b32 %s, %s, 11" % (s(S_T), s(S_T)))
    a("v_lshl_add_u32 %s, v0, 4, %s" % (v(VP), s(S_T)))
    cbits = struct.unpack("<I", struct.pack("<f", (128 ** -0.5) * math.log2(math.e)))[0]
    a("s_mov_b32 %s, 0x%x" % (s(S_C), cbits))
    a("s_lshl_b32 %s, %s, 3" % (s(S_T), s(S_BR)))
    a("s_add_u32 %s, %s, %s" % (s(S_T), s(S_T), s(S_BP)))
    a("s_lshl_b32 %s, %s, 4" % (s(S_T), s(S_T)))
    a("s_add_u32 %s, %s, %s" % (s(S_T), s(S_T), s(S_KVH)))
    a("s_mul_i32 %s, %s, %d" % (s(S_T), s(S_T), PART))
    a("s_waitcnt lgkmcnt(0)")
    srd(a, R_P, PWS, S_T, PART)
    if o.prio:
        a("s_setprio %d" % o.prio)

    p = Pipe(a, o.maxout)
    p.skip = [x for x in o.skip.split(",") if x]
    stamps = set(o.cstamps.split(","))

    def barrier(nm, drain):
        def f(pp):
            if nm in stamps and o.stamps:
                st.stamp()
                pp.drain()
            elif drain:
                pp.drain()
            pp.emit("s_barrier")
        return f
    dr = o.mode == "drain"

    def cvt(dst, src):
        return "v_cvt_pk_bf16_f32 %s, %s, %s" % (v(dst), v(src), v(src + 1))

    items, reads, fills = [], [], []
    NA, NB = 8, o.nb
    an = bn = 0
    last_use_a = [-1] * NA
    last_use_b = [-1] * NB
    for sg in range(9):
        slot = sg % NSLOT
        for j in range(4):
            base_i = len(items)
            sgate = -1 if sg == 0 else (sg * 16 - 4 + o.bpos)
            bb = bn % NB; bn += 1
            rd = dict(txt="ds_read_b128 %s, %s offset:%d" % (v(BF + 4 * bb, 4), v(VX + j), slot * 8192),
                      tag=("B", sg, j), gate=max(sgate, last_use_b[bb]))
            if j == 0:
                rd["pre"] = barrier("B%d" % sg, dr)
            reads.append(rd)
            last_use_b[bb] = base_i + 3
            for t in range(4):
                ab = an % NA; an += 1
                g = max(sgate, last_use_a[ab])
                va = VA + t + (4 if slot >= 2 else 0)
                off = (slot & 1) * 32768 + j * 8192
                for i in range(2):
                    reads.append(dict(txt="ds_read_b64_tr_b16 %s, %s offset:%d" % (
                        v(AF + 4 * ab + 2 * i, 2), v(va), off + i * 2048), tag=("A", sg, j, t, i), gate=g))
                last_use_a[ab] = base_i + t
                first = (sg == 0 and j == 0)
                items.append(dict(
                    mfma="v_mfma_f32_32x32x16_bf16 %s, %s, %s, %s" % (
                        v(ACC + 16 * t, 16), v(AF + 4 * ab, 4), v(BF + 4 * bb, 4),
                        "0" if first else v(ACC + 16 * t, 16)),
                    needs=[("B", sg, j), ("A", sg, j, t, 0), ("A", sg, j, t, 1)],
                    rate=3 if t == 3 else o.rate))
    n_p1 = len(items)
    kgate = 9 * 16 - 4 + o.bpos
    for m in range(8):
        rd = dict(txt="ds_read_b128 %s, %s" % (v(KF + 4 * m, 4), v(VK if m == 0 else VK2 + m - 1)),
                  tag=("K", m), gate=kgate)
        if m == 0:
            rd["pre"] = barrier("B9", dr)
        reads.append(rd)
    for t in range(4):
        for i in range(8):
            fills.append(dict(txt=cvt(QB + 8 * t + i, ACC + 16 * t + 2 * i), gate=n_p1 - 1, after=n_p1 - 4 + t,
                              force=True, id=("Q", t, i)))
    for m in range(8):
        items.append(dict(mfma="v_mfma_f32_32x32x16_bf16 %s, %s, %s, %s" % (
            v(SA, 16), v(KF + 4 * m, 4), v(QB + 4 * m, 4), "0" if m == 0 else v(SA, 16)),
            needs=[("K", m)], fneeds=[("Q", m // 2, 4 * (m & 1) + 3)], frate=6, rate=2))
    items[n_p1 - 1]["frate"] = 6
    for t in range(4):
        for m in range(2):
            for i in range(2):
                reads.append(dict(txt="ds_read_b64_tr_b16 %s, %s offset:%d" % (
                    v(AF + 8 * t + 4 * m + 2 * i, 2), v(VV + t), m * 4096 + i * 1024),
                    tag=("V", t, m, i), gate=n_p1 - 1))
    n_s = len(items)
    vtags = [("V", t, m, i) for t in range(4) for m in range(2) for i in range(2)]

    def softmax(pp):
        e = pp.emit
        barrier("B9x", True)(pp)
        d = pp.ninstr - items[n_s - 1]["at"]
        if d < 12:
            pp.nop(12 - d)
        S = SA
        e("v_max3_f32 %s, %s, %s, %s" % (v(T0), v(S), v(S + 1), v(S + 2)))
        e("v_max3_f32 %s, %s, %s, %s" % (v(T1), v(S + 3), v(S + 4), v(S + 5)))
        e("v_max3_f32 %s, %s, %s, %s" % (v(T2), v(S + 6), v(S + 7), v(S + 8)))
        e("v_max3_f32 %s, %s, %s, %s" % (v(T3), v(S + 9), v(S + 10), v(S + 11)))
        e("v_max3_f32 %s, %s, %s, %s" % (v(T0), v(T0), v(S + 12), v(S + 13)))
        e("v_max3_f32 %s, %s, %s, %s" % (v(T1), v(T1), v(S + 14), v(S + 15)))
        e("v_max3_f32 %s, %s, %s, %s" % (v(T0), v(T0), v(T2), v(T3)))
        e("v_max_f32 %s, %s, %s" % (v(T0), v(T0), v(T1)))
        e("v_mov_b32 %s, %s" % (v(T1), v(T0)))
        e("s_nop 1")
        e("v_permlane32_swap_b32 %s, %s" % (v(T0), v(T1)))
        e("s_nop 1")
        e("v_max_f32 %s, %s, %s" % (v(T0), v(T0), v(T1)))
        e("v_mul_f32 %s, %s, %s" % (v(T0), s(S_C), v(T0)))
        for i in range(16):
            e("v_fma_f32 %s, %s, %s, -%s" % (v(S + i), v(S + i), s(S_C), v(T0)))
            if i >= 1:
                e("v_exp_f32 %s, %s" % (v(S + i - 1), v(S + i - 1)))
        e("v_exp_f32 %s, %s" % (v(S + 15), v(S + 15)))
        e("v_add_f32 %s, %s, %s" % (v(T0), v(S), v(S + 1)))
        e("v_add_f32 %s, %s, %s" % (v(T1), v(S + 2), v(S + 3)))
        e("v_add_f32 %s, %s, %s" % (v(T2), v(S + 4), v(S + 5)))
        e("v_add_f32 %s, %s, %s" % (v(T3), v(S + 6), v(S + 7)))
        for i in range(8):
            e("v_add_f32 %s, %s, %s" % (v(T0 + (i & 3)), v(T0 + (i & 3)), v(S + 8 + i)))
        e("v_add_f32 %s, %s, %s" % (v(T0), v(T0), v(T1)))
        e("v_add_f32 %s, %s, %s" % (v(T2), v(T2), v(T3)))
        e("v_add_f32 %s, %s, %s" % (v(T0), v(T0), v(T2)))
        e("v_mov_b32 %s, %s" % (v(T1), v(T0)))
        e("s_nop 1")
        e("v_permlane32_swap_b32 %s, %s" % (v(T0), v(T1)))
        e("s_nop 1")
        e("v_add_f32 %s, %s, %s" % (v(T0), v(T0), v(T1)))
        e("v_rcp_f32 %s, %s" % (v(T0), v(T0)))
        e("s_nop 0")
        for i in range(16):
            e("v_mul_f32 %s, %s, %s" % (v(S + i), v(S + i), v(T0)))
            if i & 1 and i > 1:
                e(cvt(PF + (i >> 1) - 1, S + i - 3))
        e(cvt(PF + 7, S + 14))
        e("s_nop 1")
    items[n_s - 1]["post"] = [softmax]
    items[n_s - 1]["issue"] = vtags
    OB = QB
    for t in range(4):
        for m in range(2):
            items.append(dict(mfma="v_mfma_f32_32x32x16_bf16 %s, %s, %s, %s" % (
                v(ACC + 16 * t, 16), v(AF + 8 * t + 4 * m, 4), v(PF + 4 * m, 4),
                "0" if m == 0 else v(ACC + 16 * t, 16)),
                needs=[("V", t, m, 0), ("V", t, m, 1)], frate=6))
    n_pv = len(items)
    for t in range(4):
        for m in range(2):
            for i in range(4):
                fills.append(dict(txt=cvt(OB + 8 * t + 4 * m + i, ACC + 16 * t + 8 * m + 2 * i),
                                  gate=n_s + 2 * t + 1, after=n_s + 2 * t + 1, id=("O", 2 * t + m, i)))
            fills.append(dict(txt="ds_write_b128 %s, %s offset:%d" % (v(VOW), v(OB + 8 * t + 4 * m, 4),
                                                                    (2 * t + m) * 1024),
                              gate=n_s + 2 * t + 1, tag=("OW", t, m), id=("OW", 2 * t + m)))

    PO = KF
    A2 = AF
    ACC2 = 64
    STG = 96
    NA2 = o.na2
    last_use = [n_s + b for b in range(8)]
    an = 0
    for c in range(9):
        sg = 10 + c
        slot = sg % NSLOT
        cbase = len(items)
        for j in range(16):
            ab = an % NA2; an += 1
            sgate = -1 if c == 0 else (cbase - 16 + o.bpos2)
            g = max(sgate, last_use[ab])
            va = VWO + (j >> 3) + (2 if slot >= 2 else 0)
            off = (slot & 1) * 32768 + (j & 7) * 2048
            if c == 0 and j >= 8:
                rd = dict(txt="ds_read_b128 %s, %s offset:%d" % (v(PO + 4 * (j - 8), 4), v(VOR), (j - 8) * 1024),
                          tag=("PO", j - 8), gate=cbase + o.opos, fneeds=[("OW", 7)])
                if j == 8:
                    rd["pre"] = barrier("BO", True)
                reads.append(rd)
            for i in range(2):
                rd = dict(txt="ds_read_b64_tr_b16 %s, %s offset:%d" % (
                    v(A2 + 4 * ab + 2 * i, 2), v(va), off + i * 512), tag=("A2", c, j, i), gate=g)
                if j == 0 and i == 0 and c > 0:
                    rd["pre"] = barrier("B%d" % sg, dr)
                reads.append(rd)
            last_use[ab] = cbase + j
            acc = ACC2 + 16 * (c & 1)
            bsrc = OB + 4 * j if j < 8 else PO + 4 * (j - 8)
            needs = [("A2", c, j, 0), ("A2", c, j, 1)]
            it = dict(mfma="v_mfma_f32_32x32x16_bf16 %s, %s, %s, %s" % (
                v(acc, 16), v(A2 + 4 * ab, 4), v(bsrc, 4), "0" if j == 0 else v(acc, 16)), needs=needs,
                frate=o.frate2, rate=o.rate2)
            if c == 0:
                it["frate"] = 5
                if j >= 8:
                    needs.append(("PO", j - 8))
                else:
                    it["fneeds"] = [("O", j, 3)]
                if j == 0:
                    it["fneeds"].append(("O", 1, 3))
            if c == 1 and j == 0:
                it["fneeds"] = [("O", 3, 3)]
            items.append(it)

    for c in range(9):
        last = n_pv + 16 * c + 15
        g = last + 2 if c < 8 else last
        acc = ACC2 + 16 * (c & 1)
        fills.append(dict(fn=lambda pp, c=c: setattr(pp, "ninstr", pp.ninstr + stage_off(pp.a, c, 4096, S_T1, o.rot)),
                          gate=g))
        for m in range(2):
            sg = STG + 8 * (c & 1) + 4 * m
            for i in range(4):
                fills.append(dict(txt=cvt(sg + i, acc + 8 * m + 2 * i), gate=g, after=last, force=(c == 8)))
            fills.append(dict(txt="buffer_store_dwordx4 %s, %s, %s, %s offen offset:%d%s" % (
                v(sg, 4), v(VP), s(R_P, 4), s(S_T1), m * 1024, o.st_flags), gate=g))
    p.run(items, reads, fills, o.rate, 2)
    st.stamp()
    if o.stamps:
        a("s_waitcnt vmcnt(0)")
        st.stamp()
    st.flush()


def reduce_kernel(a, o):
    name = o.red_name
    a.raw(".globl %s\n.p2align 8\n.type %s,@function\n%s:" % (name, name, name))
    o.end = "L_red_end"
    st = Stamper(a, o.stamps)
    a("s_cmp_ge_u32 s2, 288")
    a("s_cbranch_scc1 %s" % o.end)
    a("s_load_dwordx2 %s, s[0:1], 80" % s(POUT, 2))
    a("s_load_dwordx2 %s, s[0:1], 96" % s(PWS, 2))
    st.stamp()
    if o.stamps:
        a("s_memtime %s" % s(S_CY0, 2))
    a("v_lshrrev_b32 v1, 6, v0")
    a("v_and_b32 v0, 63, v0")
    a("v_readfirstlane_b32 %s, v1" % s(S_WAVE))
    a("s_lshl_b32 s4, s2, 2")
    a("s_add_u32 s4, s4, %s" % s(S_WAVE))
    a("s_and_b32 s5, s4, 1")
    a("s_lshr_b32 s4, s4, 1")
    a("s_mul_i32 s6, s4, 3641")
    a("s_lshr_b32 s6, s6, 16")
    a("s_mul_i32 s7, s6, 18")
    a("s_sub_u32 s7, s4, s7")
    a("s_and_b32 s36, s6, 1")
    a("s_lshr_b32 s6, s6, 1")
    a("s_mul_i32 s37, s6, %d" % (16 * PART))
    a("s_mul_i32 s38, s36, 18")
    a("s_add_u32 s38, s38, s7")
    a("s_lshl_b32 s38, s38, 1")
    a("s_add_u32 s38, s38, s5")
    a("s_lshl_b32 s38, s38, 10")
    a("v_lshl_add_u32 v1, v0, 4, s38")
    a("s_waitcnt lgkmcnt(0)")
    srd(a, R_P, PWS, 37, 16 * PART)
    srd(a, R_X, POUT, None, 512 * 2304)
    a("s_mov_b32 s38, 0")
    for pidx in range(16):
        a("buffer_load_dwordx4 %s, v1, %s, s38 offen%s" % (v(16 + 4 * pidx, 4), s(R_P, 4), o.ld_flags))
        if pidx < 15:
            a("s_add_u32 s38, s38, %d" % PART)
    a("s_and_b32 s37, s6, 7")
    a("s_lshl_b32 s37, s37, 1")
    a("s_add_u32 s37, s37, s36")
    a("s_mul_i32 s37, s37, %d" % (32 * 2304))
    a("s_lshr_b32 s38, s6, 3")
    a("s_mul_i32 s38, s38, 1152")
    a("s_add_u32 s37, s37, s38")
    a("s_lshl_b32 s38, s7, 6")
    a("s_add_u32 s37, s37, s38")
    a("s_lshl_b32 s38, s5, 5")
    a("s_add_u32 s37, s37, s38")
    a("v_and_b32 v2, 31, v0")
    a("v_mul_u32_u24 v2, 2304, v2")
    a("v_lshrrev_b32 v3, 5, v0")
    a("v_lshl_add_u32 v2, v3, 4, v2")
    a("v_add_u32 v2, s37, v2")
    for pidx in range(16):
        a("s_waitcnt vmcnt(%d)" % (15 - pidx))
        for d in range(4):
            r = 16 + 4 * pidx + d
            if pidx == 0:
                a("v_lshlrev_b32 %s, 16, %s" % (v(8 + 2 * d), v(r)))
                a("v_and_b32 %s, 0xffff0000, %s" % (v(9 + 2 * d), v(r)))
            else:
                a("v_lshlrev_b32 v4, 16, %s" % v(r))
                a("v_and_b32 v5, 0xffff0000, %s" % v(r))
                a("v_add_f32 %s, %s, v4" % (v(8 + 2 * d), v(8 + 2 * d)))
                a("v_add_f32 %s, %s, v5" % (v(9 + 2 * d), v(9 + 2 * d)))
    for d in range(4):
        a("v_cvt_pk_bf16_f32 %s, %s, %s" % (v(4 + d), v(8 + 2 * d), v(9 + 2 * d)))
    a("buffer_store_dwordx4 v[4:7], v2, %s, 0 offen" % s(R_X, 4))
    if o.stamps:
        a("s_waitcnt vmcnt(0)")
        st.stamp()
        st.flush(koff=1 << 20)
    if o.probe:
        wg, w, i, j, K = [int(x) for x in o.probe.split(",")]
        if o.pre:
            wg += (2 << 20) // 1024
        a("s_cmp_lg_u32 s2, 0")
        a("s_cbranch_scc1 %s" % o.end)
        a("s_cmp_lg_u32 %s, 0" % s(S_WAVE))
        a("s_cbranch_scc1 %s" % o.end)
        a("s_memrealtime s[40:41]")
        a("s_mov_b32 s37, 0x%x" % (STAMP_OFF + (wg * 8 + w) * 128))
        srd(a, R_ST, PWS, 37, 128)
        a("v_mov_b32 v1, 0")
        a("buffer_load_dword v2, v1, %s, 0 offen offset:%d sc1" % (s(R_ST, 4), 8 * i))
        a("buffer_load_dword v3, v1, %s, 0 offen offset:%d sc1" % (s(R_ST, 4), 8 * max(j, 0)))
        a("s_waitcnt vmcnt(0) lgkmcnt(0)")
        a("v_readfirstlane_b32 s42, v2")
        a("v_readfirstlane_b32 s43, v3")
        a("s_nop 4")
        if j == -1:
            a("s_sub_u32 s42, s40, s42")
        elif j == -2:
            a("s_lshr_b32 s42, s42, 4")
        else:
            a("s_sub_u32 s42, s43, s42")
        a("s_min_u32 s42, s42, 20000")
        a("s_mul_i32 s42, s42, %d" % K)
        a("s_mov_b32 s44, 0")
        a.label("L_probe")
        a("s_memrealtime s[38:39]")
        a("s_add_u32 s44, s44, 1")
        a("s_waitcnt lgkmcnt(0)")
        a("s_sub_u32 s43, s38, s40")
        a("s_cmp_gt_u32 s44, 2000000")
        a("s_cbranch_scc1 %s" % o.end)
        a("s_cmp_lt_u32 s43, s42")
        a("s_cbranch_scc1 L_probe")
    a.label(o.end)
    a("s_endpgm")


def pre_kernel(a, o):
    name = "pre_kernel"
    a.raw(".globl %s\n.p2align 8\n.type %s,@function\n%s:" % (name, name, name))
    st = Stamper(a, True)
    a("s_cmp_ge_u32 s2, 256")
    a("s_cbranch_scc1 L_pre_end")
    a("s_load_dwordx16 %s, s[0:1], 0" % s(KA, 16))
    a("s_load_dwordx4 %s, s[0:1], 64" % s(KA + 16, 4))
    a("s_load_dwordx2 %s, s[0:1], 96" % s(KA + 24, 2))
    st.stamp()
    a("s_memtime %s" % s(S_CY0, 2))
    a("s_mov_b32 %s, 0" % s(S_WAVE))
    a("v_lshlrev_b32 v1, 7, v0")
    a("s_waitcnt lgkmcnt(0)")
    st.stamp()
    n = 0
    fl = o.pre_flags
    for (ka, share) in ((6, 18432), (16, 18432), (2, 8192), (12, 8192), (4, 8192), (14, 8192), (8, 18432), (18, 18432)):
        a("s_mul_i32 %s, s2, %d" % (s(S_T), share))
        srd(a, R_X, KA + ka, S_T, share)
        for i in range((share + 8191) // 8192):
            a("s_mov_b32 %s, %d" % (s(S_T1), i * 8192))
            a("buffer_load_dword %s, v1, %s, %s offen%s" % (v(8 + n), s(R_X, 4), s(S_T1), fl))
            n += 1
            if n == 1 and o.pre_first:
                a("s_waitcnt vmcnt(0)")
                st.stamp()
    a("s_waitcnt vmcnt(0)")
    st.stamp()
    st.flush(koff=2 << 20)
    a.label("L_pre_end")
    a("s_endpgm")


def gen(o):
    a = Asm()
    o.main_name = "main_kernel"
    o.red_name = "reduce_kernel"
    hdr = HEADER
    if o.pre:
        hdr += "; @launch kernel=pre_kernel grid=(256,1,1) block=(64,1,1) lds=0\n"
    hdr += "; @launch kernel=%s grid=(256,1,1) block=(448,1,1) lds=%d\n" % (o.main_name, LDS_TOTAL)
    if not o.noreduce:
        hdr += "; @launch kernel=%s grid=(288,1,1) block=(256,1,1) lds=0\n" % (o.red_name)
    a.raw(hdr + '.amdgcn_target "amdgcn-amd-amdhsa--gfx950"\n.text')
    main_kernel(a, o)
    reduce_kernel(a, o)
    if o.pre:
        pre_kernel(a, o)
    a.raw('.section .rodata,"a"')
    if o.pre:
        a.raw(kernel_desc("pre_kernel", 64, 102))
    a.raw(kernel_desc(o.main_name, 256, 102))
    a.raw(kernel_desc(o.red_name, 80, 102))
    return a.text()


def parse(argv):
    ap = argparse.ArgumentParser()
    ap.add_argument("-o", default="k2.s")
    ap.add_argument("--stamps", type=int, default=0)
    ap.add_argument("--cstamps", default="B1,B4,B8,B9,B9x,BO,B12,B15,B18")
    ap.add_argument("--rot", type=int, default=0)
    ap.add_argument("--nt", type=int, default=1)
    ap.add_argument("--nt_x", type=int, default=0)
    ap.add_argument("--mode", default="drain")
    ap.add_argument("--maxout", type=int, default=12)
    ap.add_argument("--rate", type=int, default=3)
    ap.add_argument("--frate2", type=int, default=2)
    ap.add_argument("--rate2", type=int, default=3)
    ap.add_argument("--bpos", type=int, default=1)
    ap.add_argument("--bpos2", type=int, default=12)
    ap.add_argument("--opos", type=int, default=3)
    ap.add_argument("--na2", type=int, default=8)
    ap.add_argument("--nb", type=int, default=3)
    ap.add_argument("--prio", type=int, default=0)
    ap.add_argument("--noload", type=int, default=0)
    ap.add_argument("--probe", default="")
    ap.add_argument("--pre", type=int, default=0)
    ap.add_argument("--pre_first", type=int, default=0)
    ap.add_argument("--pre_flags", default="")
    ap.add_argument("--noreduce", type=int, default=0)
    ap.add_argument("--skip", default="")
    ap.add_argument("--st_flags", default="")
    ap.add_argument("--ld_flags", default="")
    ap.add_argument("--pf_code", type=int, default=3)
    ap.add_argument("--pf_win", type=int, default=4)
    ap.add_argument("--wo_order", default="chunk")
    ap.add_argument("--pf_list", default="q0,x0,q1,q2,x1,q3,q4,x2,k0,k1,v0,v1,o0,o1,o2,o3,o4")
    return ap.parse_args(argv)


if __name__ == "__main__":
    o = parse(sys.argv[1:])
    open(o.o, "w").write(gen(o))
    print("wrote", o.o)
```
